```python
import torch

def _softmax(x, axis=-1):
    return torch.softmax(x, dim=axis)
def _gelu(x):
    return torch.nn.functional.gelu(x, approximate="tanh")
def _silu(x):
    return torch.nn.functional.silu(x)
def _sigmoid(x):
    return torch.sigmoid(x)
def _layernorm(x, axis=-1, eps=1e-5):
    m = x.mean(dim=axis, keepdim=True)
    v = x.var(dim=axis, keepdim=True, unbiased=False)
    return (x - m) / torch.sqrt(v + eps)
def _scatter_add(tgt, idx, src, axis=0):
    return tgt.clone().index_add_(axis, idx, src)
def _segment_sum(src, seg, n):
    out = torch.zeros((n,) + src.shape[1:], dtype=src.dtype)
    return out.index_add_(0, seg, src)
def _pad(x, pw):
    flat = tuple(v for pair in reversed(pw) for v in pair)
    return torch.nn.functional.pad(x, flat)

kernel_name = 'recurrent_scan__sliding_block__dense_activation_relu__prompt'

def setup_inputs():

    _w = (lambda a: (lambda t: t.to(torch.bfloat16) if t.is_floating_point() else t)(torch.as_tensor(a)))
    def _A_setup():
        B, S, D = 1, 2048, 512
        return {
            "x": _w((lambda *s: torch.randn(*s, dtype=torch.bfloat16) * 0.05)(B, S, D)),
            "wqkv": _w((lambda *s: torch.randn(*s, dtype=torch.bfloat16) * 0.05)(D, 3 * D)),
            "wo": _w((lambda *s: torch.randn(*s, dtype=torch.bfloat16) * 0.05)(D, D)),
        }
    _A_in = _A_setup()

    def _B_setup():
        B, S, D, Dff = 1, 2048, 512, 1792
        return {
            "x": _w((lambda *s: torch.randn(*s, dtype=torch.bfloat16) * 0.05)(B, S, D)),
            "w1": _w((lambda *s: torch.randn(*s, dtype=torch.bfloat16) * 0.05)(D, Dff)),
            "w2": _w((lambda *s: torch.randn(*s, dtype=torch.bfloat16) * 0.05)(Dff, D)),
        }
    _B_in = _B_setup()

    return {
        "A_x": _A_in["x"],
        "A_wqkv": _A_in["wqkv"],
        "A_wo": _A_in["wo"],
        "B_x": _B_in["x"],
        "B_w1": _B_in["w1"],
        "B_w2": _B_in["w2"],
    }

def reference(A_x, A_wqkv, A_wo, B_x, B_w1, B_w2):
    def _A_ref(x, wqkv, wo):
        B, S, D = x.shape
        H = 32; Dh = D // H; W = 256
        qkv = (lambda x, *d: x.permute(*d))((x @ wqkv).reshape(B, S, 3, H, Dh), 2, 0, 3, 1, 4)
        q, k, v = qkv[0], qkv[1], qkv[2]
        scores = torch.einsum("bhqd,bhkd->bhqk", q, k) * (Dh ** -0.5)
        idx = torch.arange(S)
        mask = (idx[:, None] - idx[None, :] >= 0) & (idx[:, None] - idx[None, :] < W)
        scores = torch.where(mask[None, None], scores, -1e9)
        p = _softmax(scores, axis=-1)
        o = torch.einsum("bhqk,bhkd->bhqd", p, v)
        return (lambda x, *d: x.permute(*d))(o, 0, 2, 1, 3).reshape(B, S, D) @ wo

    def _B_ref(x, w1, w2):
        h = torch.einsum("bsd,df->bsf", x, w1)
        zero = torch.zeros_like(h)
        h = torch.maximum(h, zero)
        return torch.einsum("bsf,fd->bsd", h, w2)

    x = A_x
    xn = _layernorm(x, axis=-1)
    s = _A_ref(xn, A_wqkv, A_wo)
    g = _silu(_B_ref(xn, B_w1, B_w2))
    return x + s * g
```

```python
class Asm:
    def __init__(self):
        self.L = []
        self.vm = []
        self.lg = []
        self.uid = 0
    def __call__(self, s):
        for ln in s.strip("\n").split("\n"):
            self.L.append(ln.strip())
    def c(self, s): self.L.append("; " + s)
    def label(self, name): self.L.append(name + ":")
    def newlabel(self, p="L"):
        self.uid += 1
        return "%s_%d" % (p, self.uid)
    def vmem(self, s, tag=None):
        self(s); self.vm.append(tag)
    def vm_wait(self, tag):
        idx = [i for i, t in enumerate(self.vm) if t == tag]
        if not idx: return
        last = idx[-1]
        n = len(self.vm) - 1 - last
        assert n <= 63, n
        self("s_waitcnt vmcnt(%d)" % n)
        self.vm = self.vm[last + 1:]
    def vm_wait_all(self):
        self("s_waitcnt vmcnt(0)"); self.vm = []
    def lds(self, s, tag=None):
        self(s); self.lg.append(tag)
    def lg_wait(self, tag):
        idx = [i for i, t in enumerate(self.lg) if t == tag]
        if not idx: return
        last = idx[-1]
        n = len(self.lg) - 1 - last
        if n > 15: n = 15
        self("s_waitcnt lgkmcnt(%d)" % n)
        self.lg = self.lg[len(self.lg) - n:] if n else []
    def lg_wait_all(self):
        self("s_waitcnt lgkmcnt(0)"); self.lg = []
    def text(self): return "\n".join(self.L) + "\n"

def vr(a, n=1): return "v%d" % a if n == 1 else "v[%d:%d]" % (a, a + n - 1)
def ar(a, n=1): return "a%d" % a if n == 1 else "a[%d:%d]" % (a, a + n - 1)
def sr(a, n=1): return "s%d" % a if n == 1 else "s[%d:%d]" % (a, a + n - 1)

class Alloc:
    def __init__(self, start, limit):
        self.p = start; self.limit = limit; self.names = {}
    def __call__(self, name, n=1, align=1):
        while self.p % align: self.p += 1
        r = self.p; self.p += n
        assert self.p <= self.limit, (name, self.p, self.limit)
        self.names[name] = (r, n)
        return r

def kernel_header(name):
    return ".globl %s\n.p2align 8\n.type %s,@function\n%s:\n" % (name, name, name)
def kernel_desc(name, vgpr, accum, sgpr=102):
    return """.section .rodata,"a"
.p2align 6
.amdhsa_kernel %s
  .amdhsa_next_free_vgpr %d
  .amdhsa_next_free_sgpr %d
  .amdhsa_accum_offset %d
  .amdhsa_group_segment_fixed_size 0
  .amdhsa_kernarg_size 72
  .amdhsa_user_sgpr_count 2
  .amdhsa_user_sgpr_kernarg_segment_ptr 1
  .amdhsa_system_sgpr_workgroup_id_x 1
  .amdhsa_float_denorm_mode_32 3
.end_amdhsa_kernel
.text
""" % (name, vgpr, sgpr, accum)

import re
_REG = re.compile(r"\b([vas])\[(\d+):(\d+)\]|\b([vas])(\d+)\b")
def _regs(tok):
    out = []
    for m in _REG.finditer(tok):
        if m.group(1):
            out += [(m.group(1), i) for i in range(int(m.group(2)), int(m.group(3)) + 1)]
        else:
            out.append((m.group(4), int(m.group(5))))
    return out
TRANS = ("v_exp_f32", "v_log_f32", "v_rcp_f32", "v_rsq_f32", "v_sqrt_f32", "v_sin_f32", "v_cos_f32")
def parse(line):
    s = line.split(";")[0].strip()
    if not s or s.endswith(":") or s.startswith("."): return None
    parts = s.split(None, 1)
    op = parts[0]; rest = parts[1] if len(parts) > 1 else ""
    ops = [x.strip() for x in rest.split(",")] if rest else []
    d = dict(op=op, dst=[], src=[], kind="other", text=s)
    if op.startswith("v_mfma"):
        d["kind"] = "mfma"; d["dst"] = _regs(ops[0]); d["A"] = _regs(ops[1]); d["B"] = _regs(ops[2]); d["C"] = _regs(ops[3].split()[0])
        d["src"] = d["A"] + d["B"] + d["C"]
        d["passes"] = 8 if "32x32" in op else 4
    elif op.startswith("v_cmp"):
        d["kind"] = "valu"; d["dst"] = _regs(ops[0]) if ops[0] != "vcc" else [("s", 106), ("s", 107)]
        d["src"] = sum((_regs(x) for x in ops[1:]), [])
    elif op.startswith("v_permlane") and "swap" in op:
        d["kind"] = "valu"; d["dst"] = _regs(ops[0]) + _regs(ops[1]); d["src"] = list(d["dst"]); d["perm"] = True
    elif op in ("v_readfirstlane_b32", "v_readlane_b32"):
        d["kind"] = "valu"; d["dst"] = _regs(ops[0]); d["src"] = sum((_regs(x) for x in ops[1:]), []); d["rdlane"] = True
    elif op.startswith("v_"):
        d["kind"] = "valu"; d["dst"] = _regs(ops[0]); d["src"] = sum((_regs(x) for x in ops[1:]), [])
        if op.startswith(("v_fmac", "v_dot2c", "v_pk_fmac")): d["src"] += d["dst"]
        if "vcc" in rest:
            if op.startswith(("v_cndmask", "v_addc", "v_subb")): d["src"] += [("s", 106), ("s", 107)]
            if op.startswith(("v_add_co", "v_sub_co", "v_addc", "v_subb")): d["dst"] += [("s", 106), ("s", 107)]
        if "dpp" in op or "row_" in rest or "quad_perm" in rest: d["dpp"] = True
        if op.replace("_e32", "").replace("_e64", "") in TRANS: d["trans"] = True
    elif op.startswith("ds_"):
        d["kind"] = "ds"
        if op.startswith("ds_read") or op.startswith("ds_bpermute") or op.startswith("ds_swizzle"):
            d["dst"] = _regs(ops[0]); d["src"] = sum((_regs(x.split()[0]) for x in ops[1:]), [])
        else:
            d["src"] = sum((_regs(x.split()[0]) for x in ops), [])
    elif op.startswith(("buffer_", "global_")):
        d["kind"] = "vmem"
        isld = "load" in op and " lds" not in (" " + rest)
        allr = [_regs(x.split()[0]) if x else [] for x in ops]
        if isld:
            d["dst"] = allr[0]; d["src"] = sum(allr[1:], [])
        else:
            d["src"] = sum(allr, [])
        if "store" in op and ("x4" in op or "x3" in op):
            d["widestore"] = allr[0] if op.startswith("buffer_") else allr[1]
        if " lds" in (" " + rest): d["ldsdma"] = True
    elif op.startswith("s_"):
        d["kind"] = "salu"
        if op == "s_nop": d["nop"] = int(ops[0], 0) + 1
        if ops and ops[0] == "m0" and not op.startswith("s_cmp"): d["m0w"] = True
        if op.startswith(("s_cbranch", "s_branch")): d["branch"] = ops[0]
    return d
def fix_hazards(lines, verbose=False):
    labels = {}
    for i, l in enumerate(lines):
        s = l.split(";")[0].strip()
        if s.endswith(":"): labels[s[:-1]] = i
    P = [parse(l) for l in lines]
    out = []
    hist = []
    skip_until = -1
    nins = 0
    def dist_since(pred):
        n = 0
        for p, w in reversed(hist):
            if pred(p): return n
            n += w
            if n > 24: return None
        return None
    for i, (l, p) in enumerate(zip(lines, P)):
        if p is None:
            out.append(l); continue
        need = 0
        S = set(p["src"]); Dd = set(p["dst"])
        def req(pred, n):
            nonlocal need
            d = dist_since(pred)
            if d is not None and d < n: need = max(need, n - d)
        k = p["kind"]
        if k in ("valu", "ds", "vmem"):
            touch = S | (Dd if k in ("valu", "ds", "vmem") else set())
            req(lambda q: q["kind"] == "mfma" and q["passes"] == 8 and set(q["dst"]) & touch, 12)
            req(lambda q: q["kind"] == "mfma" and q["passes"] == 4 and set(q["dst"]) & touch, 8)
        if k == "valu":
            req(lambda q: q["kind"] == "mfma" and q["passes"] == 8 and set(q["C"]) & Dd, 7)
            req(lambda q: q["kind"] == "mfma" and q["passes"] == 4 and set(q["C"]) & Dd, 3)
            if not p.get("trans"): req(lambda q: q.get("trans") and set(q["dst"]) & S, 1)
            if p.get("perm") or p.get("dpp"): req(lambda q: q["kind"] == "valu" and set(q["dst"]) & S, 2)
            if p.get("rdlane"): req(lambda q: q["kind"] == "valu" and set(q["dst"]) & S, 1)
            req(lambda q: q["kind"] == "valu" and any(r[0] == "s" and r in S for r in q["dst"]), 2)
            req(lambda q: q.get("widestore") and set(q["widestore"]) & Dd, 2)
        if k == "mfma":
            ab = set(p["A"]) | set(p["B"]); c = set(p["C"])
            req(lambda q: q["kind"] == "valu" and set(q["dst"]) & S, 2)
            req(lambda q: q["kind"] == "mfma" and q["passes"] == 8 and set(q["dst"]) & ab, 12)
            req(lambda q: q["kind"] == "mfma" and q["passes"] == 4 and set(q["dst"]) & ab, 8)
            req(lambda q: q["kind"] == "mfma" and q["passes"] == 8 and set(q["dst"]) & c and not (q["dst"] == p["C"] and q["passes"] == p["passes"]), 10)
            req(lambda q: q["kind"] == "mfma" and q["passes"] == 4 and set(q["dst"]) & c and not (q["dst"] == p["C"] and q["passes"] == p["passes"]), 6)
            req(lambda q: q["kind"] == "mfma" and set(q["dst"]) & Dd and not (q["dst"] == p["C"]) , 10)
        if k == "vmem":
            req(lambda q: q["kind"] == "valu" and any(r[0] == "s" and r in S for r in q["dst"]), 5)
            if p.get("ldsdma"): req(lambda q: q.get("m0w"), 1)
        if need:
            nins += 1
            n = need
            while n > 0:
                m = min(n, 16)
                out.append("s_nop %d" % (m - 1)); n -= m
            w = 0 if i <= skip_until else need
            hist.append((dict(kind="salu", op="s_nop", dst=[], src=[]), w))
        out.append(l)
        w = p.get("nop", 1)
        if i <= skip_until: w = 0
        hist.append((p, w))
        if p.get("branch") and p["branch"] in labels and labels[p["branch"]] > i:
            skip_until = max(skip_until, labels[p["branch"]])
        if len(hist) > 64: hist = hist[-48:]
    if verbose: print("hazard pads inserted:", nins)
    return out
```

```python
from asmlib import *
S, D, H, DH, DFF = 2048, 512, 32, 16, 1792
QF = 0
KF = 2 << 20
VF = 4 << 20
HF = 6 << 20
OF = 13 << 20
RSTD = 15 << 20
WS_USED = 16 << 20
KA_X, KA_WQKV, KA_WO, KA_BX, KA_W1, KA_W2, KA_OUT, KA_DBG, KA_WS = 0, 8, 16, 24, 32, 40, 48, 56, 64
CEXP = 0.25 * 1.4426950408889634
import struct
def f32bits(x): return struct.unpack("<I", struct.pack("<f", x))[0]
def srd(a, s, base_lo, base_hi, size):
    a("s_mov_b32 s%d, %s" % (s, base_lo))
    a("s_mov_b32 s%d, %s" % (s + 1, base_hi))
    a("s_mov_b32 s%d, %s" % (s + 2, size if isinstance(size, str) else hex(size)))
    a("s_mov_b32 s%d, 0x20000" % (s + 3))
ST = "sc1"
```

```python
from gen_common import *

def k1(name="k1_kernel", stamp=None):
    a = Asm()
    V = Alloc(1, 256)
    sX, sWA, sWB, sWS = 8, 12, 16, 20
    sW, sRB, sCG, sKB0 = 24, 25, 26, 27
    sT = 28
    sM0X, sM0A = 40, 41
    sOX, sOA, sOB = 42, 43, 44
    sTILE = 45
    sMASK = 46
    sLIGHT = 48
    lane = V("lane")
    voffX = V("voffX", 4); voffA = V("voffA", 3); voffB = V("voffB", 4)
    xad = V("xad", 12); aad = V("aad", 9); bad = V("bad", 12)
    sel = V("sel", 4, 4)
    RS = V("RS", 4, 4); CSA = V("CS", 4, 4)
    WB = V("WB", 32, 4)
    G = V("gram", 16, 4)
    accA = V("accA", 48, 4); accB = V("accB", 64, 4)
    tmp = V("tmp", 24, 4)
    mean = V("mean"); rstd = V("rstd"); voffQK = V("voffQK"); voffV = V("voffV"); csw = V("csw"); csr = V("csr")
    XA = 0
    SLOT = 28672
    CS_LDS = 143360

    a("s_cmp_ge_u32 s2, 256")
    a("s_cbranch_scc1 %s_done" % name)
    a("s_load_dwordx4 s[4:7], s[0:1], %d" % KA_X)
    a("s_load_dwordx2 s[30:31], s[0:1], %d" % KA_W1)
    a("s_load_dwordx2 s[32:33], s[0:1], %d" % KA_WS)
    a("v_lshrrev_b32 v%d, 6, v0" % tmp)
    a("v_and_b32 v%d, 63, v0" % lane)
    a("v_readfirstlane_b32 s%d, v%d" % (sW, tmp))
    a("s_and_b32 s28, s2, 7")
    a("s_lshr_b32 s29, s2, 3")
    a("s_and_b32 s34, s28, 1")
    a("s_lshl_b32 s34, s34, 3")
    a("s_and_b32 s35, s29, 7")
    a("s_add_u32 s%d, s34, s35" % sRB)
    a("s_lshr_b32 s34, s28, 1")
    a("s_lshl_b32 s34, s34, 2")
    a("s_lshr_b32 s35, s29, 3")
    a("s_add_u32 s%d, s34, s35" % sCG)
    a("s_and_b32 s%d, s%d, 7" % (sKB0, sRB))
    a("s_lshl_b32 s%d, s%d, 12" % (sM0X, sW))
    a("s_mul_i32 s%d, s%d, 3072" % (sM0A, sW))
    a("s_add_u32 s%d, s%d, 16384" % (sM0A, sM0A))
    a("s_lshl_b32 s%d, s%d, 15" % (sOX, sW))
    a("s_mul_i32 s%d, s%d, 49152" % (sOA, sW))
    a("s_mul_i32 s%d, s%d, 57344" % (sOB, sW))
    a("s_lshl_b32 s%d, s%d, 2" % (sTILE, sRB))
    a("s_add_u32 s%d, s%d, s%d" % (sTILE, sTILE, sW))
    t0, t1, t2, t3, t4, t5 = tmp, tmp + 1, tmp + 2, tmp + 3, tmp + 4, tmp + 5
    L = lane
    a("v_lshrrev_b32 v%d, 3, v%d" % (t0, L)); a("v_lshlrev_b32 v%d, 10, v%d" % (t0, t0))
    a("v_and_b32 v%d, 7, v%d" % (t1, L))
    a("v_bfe_u32 v%d, v%d, 4, 2" % (t2, L))
    a("v_xor_b32 v%d, v%d, v%d" % (t1, t1, t2))
    for j in range(4):
        a("v_xor_b32 v%d, %d, v%d" % (t3, 4 * (j & 1), t1))
        a("v_lshlrev_b32 v%d, 4, v%d" % (t3, t3))
        a("v_add_u32 v%d, v%d, v%d" % (t3, t3, t0))
        a("v_add_u32 v%d, %d, v%d" % (voffX + j, 7168 * j, t3))
    a("s_mov_b32 s34, 43691")
    for t in range(3):
        a("v_add_u32 v%d, %d, v%d" % (t0, 64 * t, L))
        a("v_mul_u32_u24 v%d, s34, v%d" % (t1, t0))
        a("v_lshrrev_b32 v%d, 19, v%d" % (t1, t1))
        a("v_mul_u32_u24 v%d, 12, v%d" % (t2, t1))
        a("v_sub_u32 v%d, v%d, v%d" % (t2, t0, t2))
        a("v_lshlrev_b32 v%d, 4, v%d" % (t2, t2))
        a("v_mul_u32_u24 v%d, 0xc00, v%d" % (t1, t1))
        a("v_add_u32 v%d, v%d, v%d" % (t1, t1, t2))
        a("v_subrev_u32 v%d, %d, v%d" % (voffA + t, 1024 * t, t1))
    a("v_lshrrev_b32 v%d, 4, v%d" % (t0, L))
    a("v_mul_u32_u24 v%d, 0xe00, v%d" % (t1, t0))
    a("v_bfe_u32 v%d, v%d, 2, 2" % (t2, L))
    a("v_xor_b32 v%d, v%d, v%d" % (t2, t2, t0))
    a("v_lshlrev_b32 v%d, 6, v%d" % (t2, t2))
    a("v_add_u32 v%d, v%d, v%d" % (t1, t1, t2))
    a("v_and_b32 v%d, 3, v%d" % (t2, L)); a("v_lshlrev_b32 v%d, 4, v%d" % (t2, t2))
    a("v_add_u32 v%d, v%d, v%d" % (t1, t1, t2))
    for t in range(4):
        a("v_add_u32 v%d, %d, v%d" % (voffB + t, 13312 * t, t1))
    a("s_waitcnt lgkmcnt(0)")
    a("s_lshl_b32 s34, s%d, 17" % sRB)
    a("s_add_u32 s%d, s4, s34" % sX); a("s_addc_u32 s%d, s5, 0" % (sX + 1))
    a("s_mov_b32 s%d, 0x20000" % (sX + 2)); a("s_mov_b32 s%d, 0x20000" % (sX + 3))
    a("s_mul_i32 s34, s%d, 192" % sCG)
    a("s_add_u32 s%d, s6, s34" % sWA); a("s_addc_u32 s%d, s7, 0" % (sWA + 1))
    a("s_sub_u32 s%d, %d, s34" % (sWA + 2, 512 * 3072)); a("s_mov_b32 s%d, 0x20000" % (sWA + 3))
    a("s_lshr_b32 s34, s%d, 2" % sCG); a("s_mul_i32 s34, s34, 7")
    a("s_and_b32 s35, s%d, 3" % sCG)
    a("s_cmp_eq_u32 s35, 3"); a("s_cselect_b32 s%d, 1, 0" % sLIGHT)
    a("s_lshl_b32 s35, s35, 1"); a("s_add_u32 s34, s34, s35")
    a("s_mov_b32 s49, s34")
    a("s_lshl_b32 s34, s34, 7")
    a("s_add_u32 s%d, s30, s34" % sWB); a("s_addc_u32 s%d, s31, 0" % (sWB + 1))
    a("s_sub_u32 s%d, %d, s34" % (sWB + 2, 512 * 3584)); a("s_mov_b32 s%d, 0x20000" % (sWB + 3))
    a("s_mov_b32 s%d, s32" % sWS); a("s_mov_b32 s%d, s33" % (sWS + 1))
    a("s_mov_b32 s%d, %s" % (sWS + 2, hex(WS_USED))); a("s_mov_b32 s%d, 0x20000" % (sWS + 3))

    def issue_item(i):
        base = (i % 5) * SLOT
        a("s_add_u32 s28, s%d, %d" % (sKB0, i & 7)); a("s_and_b32 s28, s28, 7")
        if i < 8:
            a("s_lshl_b32 s29, s28, 7"); a("s_add_u32 s29, s29, s%d" % sOX)
            a("s_add_u32 m0, s%d, %d" % (sM0X, base))
            a("s_mul_i32 s34, s28, 196608"); a("s_add_u32 s34, s34, s%d" % sOA)
            for j in range(4):
                a.vmem("buffer_load_dwordx4 v%d, s[%d:%d], s29 offen offset:%d lds" % (voffX + j, sX, sX + 3, 1024 * j), ("item", i))
            a("s_add_u32 m0, s%d, %d" % (sM0A, base))
            a("s_nop 0")
            for t in range(3):
                a.vmem("buffer_load_dwordx4 v%d, s[%d:%d], s34 offen offset:%d lds" % (voffA + t, sWA, sWA + 3, 1024 * t), ("item", i))
        else:
            a("s_mul_i32 s34, s28, 229376"); a("s_add_u32 s34, s34, s%d" % sOB)
            a("s_add_u32 m0, s%d, %d" % (sM0X, base))
            a("s_nop 0")
            for t in range(4):
                a.vmem("buffer_load_dwordx4 v%d, s[%d:%d], s34 offen offset:%d lds" % (voffB + t, sWB, sWB + 3, 1024 * t), ("item", i))
    for i in range(4): issue_item(i)

    a("v_and_b32 v%d, 31, v%d" % (t0, L))
    a("v_lshrrev_b32 v%d, 3, v%d" % (t1, t0)); a("v_lshlrev_b32 v%d, 10, v%d" % (t1, t1))
    a("v_and_b32 v%d, 7, v%d" % (t2, t0)); a("v_lshlrev_b32 v%d, 7, v%d" % (t2, t2))
    a("v_add_u32 v%d, v%d, v%d" % (t1, t1, t2))
    a("v_bfe_u32 v%d, v%d, 1, 3" % (t2, t0))
    a("v_lshrrev_b32 v%d, 5, v%d" % (t3, L))
    a("v_xor_b32 v%d, v%d, v%d" % (t2, t2, t3)); a("v_lshlrev_b32 v%d, 4, v%d" % (t2, t2))
    a("v_add_u32 v%d, v%d, v%d" % (t1, t1, t2))
    a("v_add_u32 v%d, s%d, v%d" % (t1, sM0X, t1))
    for sp in range(4):
        a("v_xor_b32 v%d, %d, v%d" % (xad + sp, 32 * sp, t1))
        for rg in (1, 2):
            a("v_add_u32 v%d, %d, v%d" % (xad + 4 * rg + sp, 57344 * rg, xad + sp))
    r_, c_, nh_, hi_ = t0, t1, t2, t3
    a("v_bfe_u32 v%d, v%d, 2, 2" % (r_, L)); a("v_and_b32 v%d, 3, v%d" % (c_, L))
    a("v_bfe_u32 v%d, v%d, 4, 1" % (nh_, L)); a("v_lshrrev_b32 v%d, 5, v%d" % (hi_, L))
    a("v_lshlrev_b32 v%d, 3, v%d" % (t4, hi_)); a("v_add_u32 v%d, v%d, v%d" % (t4, t4, r_))
    a("v_lshlrev_b32 v%d, 5, v%d" % (nh_, nh_)); a("v_lshlrev_b32 v%d, 3, v%d" % (c_, c_))
    a("v_add_u32 v%d, v%d, v%d" % (c_, c_, nh_))
    a("v_mul_u32_u24 v%d, 192, v%d" % (t5, t4)); a("v_add_u32 v%d, v%d, v%d" % (t5, t5, c_))
    for j in range(3):
        a("s_add_u32 s28, s%d, %d" % (sW, j))
        a("s_cmp_ge_u32 s28, 3"); a("s_cselect_b32 s29, 3, 0"); a("s_sub_u32 s28, s28, s29")
        a("s_cmp_ge_u32 s28, 3"); a("s_cselect_b32 s29, 3, 0"); a("s_sub_u32 s28, s28, s29")
        a("s_mov_b32 s%d, s28" % (50 + j))
        a("s_lshl_b32 s28, s28, 6"); a("s_add_u32 s28, s28, 16384")
        a("v_add_u32 v%d, s28, v%d" % (aad + j, t5))
        for rg in (1, 2): a("v_add_u32 v%d, %d, v%d" % (aad + 3 * rg + j, 57344 * rg, aad + j))
    a("v_lshlrev_b32 v%d, 8, v%d" % (t5, t4)); a("v_add_u32 v%d, v%d, v%d" % (t5, t5, c_))
    for j in range(4):
        a("s_add_u32 s28, s%d, %d" % (sW, j)); a("s_and_b32 s28, s28, 3")
        a("s_mov_b32 s%d, s28" % (54 + j))
        a("v_xor_b32 v%d, s28, v%d" % (t4, r_)); a("v_lshlrev_b32 v%d, 6, v%d" % (t4, t4))
        a("v_add_u32 v%d, v%d, v%d" % (bad + j, t4, t5))
        for rg in (1, 2): a("v_add_u32 v%d, %d, v%d" % (bad + 4 * rg + j, 57344 * rg, bad + j))
    a("v_and_b32 v%d, 1, v%d" % (t4, L)); a("v_bfe_u32 v%d, v%d, 4, 1" % (t5, L))
    a("v_cmp_eq_u32 s[46:47], v%d, v%d" % (t4, t5))
    a("v_mov_b32 v%d, 0x3f803f80" % t4)
    a("v_mov_b32 v%d, 0" % t5)
    for q in range(4): a("v_cndmask_b32 v%d, v%d, v%d, s[46:47]" % (sel + q, t5, t4))
    a("v_and_b32 v%d, 1, v%d" % (t4, L)); a("v_lshlrev_b32 v%d, 6, v%d" % (t4, t4))
    a("v_lshrrev_b32 v%d, 4, v%d" % (t5, L)); a("v_lshlrev_b32 v%d, 4, v%d" % (t5, t5))
    a("v_add_u32 v%d, v%d, v%d" % (t4, t4, t5)); a("v_add_u32 v%d, %d, v%d" % (csw, CS_LDS, t4))
    a("v_lshrrev_b32 v%d, 5, v%d" % (t4, L)); a("v_lshlrev_b32 v%d, 4, v%d" % (t4, t4))
    a("v_add_u32 v%d, %d, v%d" % (csr, CS_LDS, t4))
    a("v_lshlrev_b32 v%d, 4, v%d" % (voffQK, L))
    a("v_and_b32 v%d, 31, v%d" % (t4, L)); a("v_lshlrev_b32 v%d, 5, v%d" % (t4, t4))
    a("v_lshrrev_b32 v%d, 5, v%d" % (t5, L)); a("v_lshlrev_b32 v%d, 4, v%d" % (t5, t5))
    a("v_add_u32 v%d, v%d, v%d" % (voffV, t4, t5))

    def reads(tg, passB):
        item = (tg >> 2) + (8 if passB else 0); sp = tg & 3
        slot = item % 5; rg = slot // 2; ib = (slot % 2) * SLOT
        buf = WB + 16 * (tg & 1)
        R = []
        if not passB:
            R.append("ds_read_b128 a[%d:%d], v%d offset:%d" % (XA + 4 * tg, XA + 4 * tg + 3, xad + 4 * rg + sp, ib))
            for j in range(3):
                for u in range(2):
                    R.append("ds_read_b64_tr_b16 v[%d:%d], v%d offset:%d" % (buf + 4 * j + 2 * u, buf + 4 * j + 2 * u + 1, aad + 3 * rg + j, ib + sp * 3072 + u * 768))
        else:
            for j in range(4):
                for u in range(2):
                    R.append("ds_read_b64_tr_b16 v[%d:%d], v%d offset:%d" % (buf + 4 * j + 2 * u, buf + 4 * j + 2 * u + 1, bad + 4 * rg + j, ib + sp * 4096 + u * 1024))
        return R
    def mfmas(tg, passB):
        buf = WB + 16 * (tg & 1)
        xa = "a[%d:%d]" % (XA + 4 * tg, XA + 4 * tg + 3)
        M = []
        first = (tg == 0)
        if not passB:
            for j in range(3):
                acc = "v[%d:%d]" % (accA + 16 * j, accA + 16 * j + 15)
                M.append("v_mfma_f32_32x32x16_bf16 %s, v[%d:%d], %s, %s" % (acc, buf + 4 * j, buf + 4 * j + 3, xa, "0" if first else acc))
            g = "v[%d:%d]" % (G, G + 15)
            M.append("v_mfma_f32_32x32x16_bf16 %s, %s, %s, %s" % (g, xa, xa, "0" if first else g))
            rs = "v[%d:%d]" % (RS, RS + 3)
            M.append("v_mfma_f32_16x16x32_bf16 %s, v[%d:%d], %s, %s" % (rs, sel, sel + 3, xa, "0" if first else rs))
        else:
            for j in range(4):
                acc = "v[%d:%d]" % (accB + 16 * j, accB + 16 * j + 15)
                M.append("v_mfma_f32_32x32x16_bf16 %s, v[%d:%d], %s, %s" % (acc, buf + 4 * j, buf + 4 * j + 3, xa, "0" if first else acc))
        cs = "v[%d:%d]" % (CSA, CSA + 3)
        M.append("v_mfma_f32_16x16x32_bf16 %s, v[%d:%d], v[%d:%d], %s" % (cs, buf, buf + 3, sel, sel + 3, "0" if first else cs))
        return M

    def run_pass(passB):
        item0 = 8 if passB else 0
        a.vm_wait(("item", item0)); a("s_barrier")
        if item0 + 4 < 16: issue_item(item0 + 4)
        for r in reads(0, passB): a.lds(r, ("rd", 0))
        for tg in range(32):
            nxt = tg + 1
            a.lg_wait(("rd", tg))
            if nxt < 32 and (nxt & 3) == 0:
                it = item0 + (nxt >> 2)
                a.vm_wait(("item", it)); a("s_barrier")
                if it + 4 < 16: issue_item(it + 4)
            R = reads(nxt, passB) if nxt < 32 else []
            M = mfmas(tg, passB)
            k = 0
            for mi, m in enumerate(M):
                a(m)
                n = (len(R) * (mi + 1) + len(M) - 1) // len(M) if mi < len(M) - 1 else len(R)
                n = min(len(R), max(n, 0))
                while k < n:
                    a.lds(R[k], ("rd", nxt)); k += 1

    def cvt_store(acc, kind, soff_expr_setup, voff):
        pass

    run_pass(False)
    a("s_nop 15")
    a("s_lshl_b32 s28, s50, 7")
    a("v_add_u32 v%d, s28, v%d" % (t0, csw))
    a.lds("ds_write_b128 v%d, v[%d:%d]" % (t0, CSA, CSA + 3), "csw")
    a("v_bfe_u32 v%d, v%d, 4, 1" % (t1, L)); a("v_cmp_eq_u32 s[46:47], 1, v%d" % t1)
    a("s_nop 1")
    a("v_cndmask_b32 v%d, v%d, v%d, s[46:47]" % (mean, RS, RS + 1))
    a("v_mul_f32 v%d, %s, v%d" % (mean, hex(f32bits(1.0 / 512)), mean))
    a("v_bfe_u32 v%d, v%d, 3, 2" % (t1, L)); a("v_lshlrev_b32 v%d, 2, v%d" % (t1, t1))
    a("v_and_b32 v%d, 3, v%d" % (t2, L)); a("v_add_u32 v%d, v%d, v%d" % (t1, t1, t2))
    a("v_mov_b32 v%d, v%d" % (t2, G))
    for r in range(1, 16):
        a("v_cmp_eq_u32 s[46:47], %d, v%d" % (r, t1))
        a("s_nop 1")
        a("v_cndmask_b32 v%d, v%d, v%d, s[46:47]" % (t2, t2, G + r))
    a("v_mov_b32 v%d, v%d" % (t3, t2))
    a("s_nop 1")
    a("v_permlane32_swap_b32 v%d, v%d" % (t2, t3))
    a("v_bfe_u32 v%d, v%d, 2, 1" % (t1, L)); a("v_cmp_eq_u32 s[46:47], 1, v%d" % t1)
    a("s_nop 1")
    a("v_cndmask_b32 v%d, v%d, v%d, s[46:47]" % (t2, t2, t3))
    a("v_mul_f32 v%d, %s, v%d" % (t2, hex(f32bits(1.0 / 512)), t2))
    a("v_fma_f32 v%d, -v%d, v%d, v%d" % (t2, mean, mean, t2))
    a("v_max_f32 v%d, 0, v%d" % (t2, t2))
    a("v_cvt_pk_bf16_f32 v%d, v%d, v%d" % (t2, t2, t2)); a("v_lshlrev_b32 v%d, 16, v%d" % (t2, t2))
    a("v_add_f32 v%d, %s, v%d" % (t2, hex(f32bits(1e-5)), t2))
    a("v_cvt_pk_bf16_f32 v%d, v%d, v%d" % (t2, t2, t2)); a("v_lshlrev_b32 v%d, 16, v%d" % (t2, t2))
    a("v_sqrt_f32 v%d, v%d" % (t2, t2)); a("s_nop 0")
    a("v_cvt_pk_bf16_f32 v%d, v%d, v%d" % (t2, t2, t2)); a("v_lshlrev_b32 v%d, 16, v%d" % (t2, t2))
    a("v_rcp_f32 v%d, v%d" % (rstd, t2)); a("s_nop 0")
    a("v_sub_f32 v%d, 0, v%d" % (mean, mean))
    skip = a.newlabel("k1_nors")
    a("s_cmp_lg_u32 s%d, 0" % sCG); a("s_cbranch_scc1 %s" % skip)
    a("s_lshl_b32 s28, s%d, 7" % sTILE); a("s_add_u32 s28, s28, %s" % hex(RSTD))
    a("v_and_b32 v%d, 31, v%d" % (t1, L)); a("v_lshlrev_b32 v%d, 2, v%d" % (t1, t1))
    a("buffer_store_dword v%d, v%d, s[%d:%d], s28 offen %s" % (rstd, t1, sWS, sWS + 3, ST))
    a.label(skip)
    a.lg_wait("csw"); a("s_barrier")

    cs = tmp + 8
    def epilogue_frag(acc, frag_s, lds_off, kindA, j):
        a("s_lshl_b32 s28, s%d, 7" % frag_s)
        a("v_add_u32 v%d, s28, v%d" % (t0, csr))
        for q in range(4):
            a.lds("ds_read_b128 v[%d:%d], v%d offset:%d" % (cs + 4 * q, cs + 4 * q + 3, t0, lds_off + 32 * q), "csr")
        if kindA:
            a("s_mul_i32 s29, s%d, 3" % sCG); a("s_add_u32 s29, s29, s%d" % frag_s)
            a("s_lshr_b32 s34, s29, 4"); a("s_and_b32 s35, s29, 15")
            a("s_lshl_b32 s36, s34, 21"); a("s_lshl_b32 s35, s35, 17"); a("s_add_u32 s36, s36, s35")
            a("s_lshl_b32 s35, s%d, 10" % sTILE); a("s_add_u32 s36, s36, s35")
            a("s_add_u32 s37, s36, 65536")
            a("s_cmp_eq_u32 s34, 0"); a("s_cselect_b32 s38, %s, 1.0" % hex(f32bits(CEXP)))
            a("s_cmp_eq_u32 s34, 2"); a("s_cselect_b64 s[46:47], -1, 0")
            a("v_mul_f32 v%d, s38, v%d" % (t1, rstd))
            a("v_cndmask_b32 v%d, v%d, v%d, s[46:47]" % (t2, voffQK, voffV))
        else:
            a("s_lshl_b32 s36, s49, 2"); a("s_lshl_b32 s35, s%d, 1" % frag_s); a("s_add_u32 s36, s36, s35")
            a("s_mul_i32 s35, s%d, 112" % sTILE); a("s_add_u32 s36, s36, s35")
            a("s_lshl_b32 s36, s36, 10"); a("s_add_u32 s36, s36, %s" % hex(HF))
            a("s_add_u32 s37, s36, 1024")
        a.lg_wait("csr")
        for r in range(16):
            a("v_fma_f32 v%d, v%d, v%d, v%d" % (acc + r, mean, cs + r, acc + r))
        if kindA:
            for r in range(16): a("v_mul_f32 v%d, v%d, v%d" % (acc + r, t1, acc + r))
        for r in range(0, 16, 2):
            a("v_cvt_pk_bf16_f32 v%d, v%d, v%d" % (cs + r // 2, acc + r, acc + r + 1))
        if not kindA:
            for q in range(8): a("v_pk_max_i16 v%d, v%d, 0" % (cs + q, cs + q))
        vo = t2 if kindA else voffQK
        lab = None
        if not kindA:
            lab = a.newlabel("k1_nost")
            a("s_cmp_ge_u32 s%d, 2" % frag_s); a("s_cselect_b32 s35, s%d, 0" % sLIGHT)
            a("s_cmp_lg_u32 s35, 0"); a("s_cbranch_scc1 %s" % lab)
        a("buffer_store_dwordx4 v[%d:%d], v%d, s[%d:%d], s36 offen %s" % (cs, cs + 3, vo, sWS, sWS + 3, ST))
        a("buffer_store_dwordx4 v[%d:%d], v%d, s[%d:%d], s37 offen %s" % (cs + 4, cs + 7, vo, sWS, sWS + 3, ST))
        if lab: a.label(lab)
        if kindA: a.vm.append("st"); a.vm.append("st")
    for j in range(3):
        epilogue_frag(accA + 16 * j, 50 + j, 0, True, j)
    run_pass(True)
    a("s_nop 15")
    a("s_lshl_b32 s28, s54, 7")
    a("v_add_u32 v%d, s28, v%d" % (t0, csw))
    a.lds("ds_write_b128 v%d, v[%d:%d] offset:512" % (t0, CSA, CSA + 3), "csw")
    a.lg_wait("csw"); a("s_barrier")
    for j in range(4):
        epilogue_frag(accB + 16 * j, 54 + j, 512, False, j)
    a("s_waitcnt vmcnt(0)")
    a.label("%s_done" % name)
    a("s_endpgm")
    a.L = fix_hazards(a.L, True)
    return kernel_header(name) + a.text() + kernel_desc(name, 384, 256)
```

```python
from gen_common import *
NEG = -1.0e30

def k2(name="k2_kernel"):
    a = Asm()
    V = Alloc(1, 256)
    sWS = 8
    sW, sHEAD, sQB, sTINV = 12, 13, 14, 15
    lane = V("lane")
    kad = V("kad"); vad = V("vad"); voff = V("voff")
    t0 = V("t", 8); t1, t2, t3, t4, t5 = t0 + 1, t0 + 2, t0 + 3, t0 + 4, t0 + 5
    SA = V("SA", 32, 4); SB = V("SB", 32, 4)
    MO = V("maskOld", 16, 4); MD = V("maskDiag", 16, 4)
    AO = V("andOld", 8, 4); AD = V("andDiag", 8, 4)
    PA = V("PA", 8, 4); PB = V("PB", 8, 4)
    mA = V("mA"); mB = V("mB")
    QA, QB_, KB, VB, OA, OB = 0, 4, 8, 16, 32, 48
    KL, VL, ONES = 0, 16384, 32768
    L = lane
    a("s_cmp_ge_u32 s2, 256"); a("s_cbranch_scc1 %s_done" % name)
    a("s_load_dwordx2 s[4:5], s[0:1], %d" % KA_WS)
    a("v_lshrrev_b32 v%d, 6, v0" % t0); a("v_and_b32 v%d, 63, v0" % lane)
    a("v_readfirstlane_b32 s%d, v%d" % (sW, t0))
    a("s_and_b32 s16, s2, 7"); a("s_lshr_b32 s17, s2, 3")
    a("s_lshl_b32 s16, s16, 2"); a("s_and_b32 s18, s17, 3"); a("s_add_u32 s%d, s16, s18" % sHEAD)
    a("s_lshr_b32 s%d, s17, 2" % sQB)
    a("v_lshlrev_b32 v%d, 4, v%d" % (voff, L))
    a("s_waitcnt lgkmcnt(0)")
    srd(a, sWS, "s4", "s5", WS_USED)
    a("s_lshl_b32 s16, s%d, 16" % sHEAD)
    a("s_lshl_b32 s17, s%d, 3" % sQB); a("s_lshl_b32 s18, s%d, 2" % sW); a("s_add_u32 s17, s17, s18")
    a("s_sub_u32 s17, s17, 8")
    a("s_lshl_b32 s17, s17, 10"); a("s_add_u32 s17, s17, s16")
    a("s_add_u32 s19, s17, %s" % hex(KF)); a("s_add_u32 s20, s17, %s" % hex(VF))
    sk = a.newlabel("k2_skipdma")
    a("s_cmp_eq_u32 s%d, 0" % sQB); a("s_cselect_b32 s21, 1, 0")
    a("s_cmp_lt_u32 s%d, 2" % sW); a("s_cselect_b32 s21, s21, 0")
    a("s_cmp_lg_u32 s21, 0"); a("s_cbranch_scc1 %s" % sk)
    a("s_lshl_b32 s22, s%d, 12" % sW)
    a("s_mov_b32 m0, s22")
    for j in range(4): a("buffer_load_dwordx4 v%d, s[%d:%d], s19 offen offset:%d lds" % (voff, sWS, sWS + 3, 1024 * j))
    a("s_add_u32 m0, s22, %d" % VL)
    for j in range(4): a("buffer_load_dwordx4 v%d, s[%d:%d], s20 offen offset:%d lds" % (voff, sWS, sWS + 3, 1024 * j))
    a.label(sk)
    a("s_lshl_b32 s17, s%d, 3" % sQB); a("s_lshl_b32 s18, s%d, 1" % sW); a("s_add_u32 s23, s17, s18")
    a("s_lshl_b32 s17, s23, 10"); a("s_add_u32 s17, s17, s16"); a("s_add_u32 s17, s17, %s" % hex(QF))
    a("buffer_load_dwordx4 a[%d:%d], v%d, s[%d:%d], s17 offen" % (QA, QA + 3, voff, sWS, sWS + 3))
    a("buffer_load_dwordx4 a[%d:%d], v%d, s[%d:%d], s17 offen offset:1024" % (QB_, QB_ + 3, voff, sWS, sWS + 3))
    a("s_lshl_b32 s18, s%d, 1" % sW); a("s_sub_u32 s18, 8, s18")
    a("s_cmp_eq_u32 s%d, 0" % sQB); a("s_cselect_b32 s%d, s18, 0" % sTINV)
    a("v_mov_b32 v%d, 0x3f803f80" % t0)
    for q in range(1, 4): a("v_mov_b32 v%d, v%d" % (t0 + q + 3, t0))
    a("v_mov_b32 v%d, v%d" % (t0 + 3 + 0, t0))
    ones4 = SA
    for q in range(4): a("v_mov_b32 v%d, 0x3f803f80" % (ones4 + q))
    a("v_add_u32 v%d, %d, v%d" % (t1, ONES, voff))
    a("ds_write_b128 v%d, v[%d:%d]" % (t1, ones4, ones4 + 3))
    a("v_and_b32 v%d, 31, v%d" % (t1, L))
    a("v_lshrrev_b32 v%d, 5, v%d" % (t2, L)); a("v_lshlrev_b32 v%d, 2, v%d" % (t2, t2))
    a("v_sub_u32 v%d, v%d, v%d" % (t1, t1, t2))
    a("v_mov_b32 v%d, %s" % (t3, hex(f32bits(NEG)))); a("v_mov_b32 v%d, 0" % t4)
    for r in range(16):
        i0 = 8 * (r >> 2) + (r & 3)
        a("v_cmp_ge_i32 s[24:25], v%d, %d" % (t1, i0))
        a("v_cndmask_b32 v%d, v%d, v%d, s[24:25]" % (MD + r, t3, t4))
        a("v_cndmask_b32 v%d, v%d, v%d, s[24:25]" % (MO + r, t4, t3))
    a("v_mov_b32 v%d, 0xffff" % t3); a("v_mov_b32 v%d, 0xffff0000" % t5)
    for q in range(8):
        for h in range(2):
            r = 2 * q + h; i0 = 8 * (r >> 2) + (r & 3)
            a("v_cmp_ge_i32 s[24:25], v%d, %d" % (t1, i0))
            a("v_cndmask_b32 v%d, v%d, v%d, s[24:25]" % (t0 + 6 + h, t4, t3 if h == 0 else t5))
        a("v_or_b32 v%d, v%d, v%d" % (AD + q, t0 + 6, t0 + 7))
        a("v_not_b32 v%d, v%d" % (AO + q, AD + q))
    a("s_lshl_b32 s18, s%d, 11" % sW)
    a("v_add_u32 v%d, s18, v%d" % (kad, voff))
    a("v_bfe_u32 v%d, v%d, 2, 2" % (t1, L)); a("v_lshrrev_b32 v%d, 5, v%d" % (t2, L))
    a("v_lshlrev_b32 v%d, 2, v%d" % (t3, t2)); a("v_add_u32 v%d, v%d, v%d" % (t3, t3, t1))
    a("v_lshlrev_b32 v%d, 5, v%d" % (t3, t3))
    a("v_and_b32 v%d, 1, v%d" % (t4, L)); a("v_lshlrev_b32 v%d, 4, v%d" % (t4, t4)); a("v_add_u32 v%d, v%d, v%d" % (t3, t3, t4))
    a("v_bfe_u32 v%d, v%d, 1, 1" % (t4, L)); a("v_lshlrev_b32 v%d, 3, v%d" % (t4, t4)); a("v_add_u32 v%d, v%d, v%d" % (t3, t3, t4))
    a("s_add_u32 s18, s18, %d" % VL)
    a("v_add_u32 v%d, s18, v%d" % (t3, t3))
    vadO = V("vadO")
    a("v_lshlrev_b32 v%d, 7, v%d" % (t4, t2)); a("v_sub_u32 v%d, %d, v%d" % (t4, ONES + 128, t4))
    a("v_bfe_u32 v%d, v%d, 4, 1" % (t5, L)); a("v_cmp_eq_u32 s[26:27], 1, v%d" % t5)
    a("v_cndmask_b32 v%d, v%d, v%d, s[26:27]" % (vad, t3, t4))
    a("v_mov_b32 v%d, 1024" % t5); a("v_mov_b32 v%d, 0" % t4)
    vstep = V("vstep")
    a("v_cndmask_b32 v%d, v%d, v%d, s[26:27]" % (vstep, t5, t4))
    a("v_mul_u32_u24 v%d, s%d, v%d" % (t4, sTINV, vstep)); a("v_add_u32 v%d, v%d, v%d" % (vad, vad, t4))
    a("v_mov_b32 v%d, %s" % (mA, hex(f32bits(NEG)))); a("v_mov_b32 v%d, %s" % (mB, hex(f32bits(NEG))))
    a("s_waitcnt vmcnt(0) lgkmcnt(0)"); a("s_barrier")

    def kread(t): return "ds_read_b128 a[%d:%d], v%d offset:%d" % (KB + 4 * (t & 1), KB + 4 * (t & 1) + 3, kad, 1024 * t)
    def smf(dst, t, q, c):
        return "v_mfma_f32_32x32x16_bf16 v[%d:%d], a[%d:%d], a[%d:%d], %s" % (dst, dst + 15, KB + 4 * (t & 1), KB + 4 * (t & 1) + 3, q, q + 3, c)
    actA = lambda t: 0 <= t <= 8
    actB = lambda t: 1 <= t <= 9
    def jump_table(prefix):
        for tv in (2, 4, 6, 8):
            a("s_cmp_eq_u32 s%d, %d" % (sTINV, tv)); a("s_cbranch_scc1 %s_%d" % (prefix, tv))
    def entry_read(prefix):
        a("s_lshl_b32 s18, s%d, 10" % sTINV); a("v_add_u32 v%d, s18, v%d" % (t0, kad))
        a("ds_read_b128 a[%d:%d], v%d" % (KB, KB + 3, t0))
    entry_read("p1")
    jump_table(name + "_p1")
    for t in range(11):
        if t in (2, 4, 6, 8): a.label("%s_p1_%d" % (name, t))
        if t <= 9:
            a("s_waitcnt lgkmcnt(0)")
            if actA(t): a(smf(SA + 16 * (t & 1), t, QA, "v[%d:%d]" % (MO, MO + 15) if t == 0 else ("v[%d:%d]" % (MD, MD + 15) if t == 8 else "0")))
            if actB(t): a(smf(SB + 16 * (t & 1), t, QB_, "v[%d:%d]" % (MO, MO + 15) if t == 1 else ("v[%d:%d]" % (MD, MD + 15) if t == 9 else "0")))
            if t + 1 <= 9: a(kread(t + 1))
        p = t - 1
        if p >= 0:
            lab = None
            if t in (2, 4, 6, 8):
                lab = a.newlabel(name + "_s1"); a("s_cmp_eq_u32 s%d, %d" % (sTINV, t)); a("s_cbranch_scc1 %s" % lab)
            for (act, Sx, m) in ((actA, SA, mA), (actB, SB, mB)):
                if act(p):
                    b = Sx + 16 * (p & 1)
                    for q in range(8): a("v_max3_f32 v%d, v%d, v%d, v%d" % (m, b + 2 * q, b + 2 * q + 1, m))
            if lab: a.label(lab)
    NMA, NMB = MO, MD
    for m in (mA, mB):
        a("v_mov_b32 v%d, v%d" % (t0, m))
        a("v_permlane32_swap_b32 v%d, v%d" % (m, t0))
        a("v_max_f32 v%d, v%d, v%d" % (m, m, t0))
        a("v_sub_f32 v%d, 0, v%d" % (m, m))
    for r in range(16):
        a("v_mov_b32 v%d, v%d" % (NMA + r, mA)); a("v_mov_b32 v%d, v%d" % (NMB + r, mB))
    for r in range(16):
        a("v_accvgpr_write_b32 a%d, 0" % (OA + r)); a("v_accvgpr_write_b32 a%d, 0" % (OB + r))
    def vreads(t):
        vb = VB + 8 * (t & 1); R = []
        for aa in range(2):
            for u in range(2):
                R.append("ds_read_b64_tr_b16 a[%d:%d], v%d offset:%d" % (vb + 4 * aa + 2 * u, vb + 4 * aa + 2 * u + 1, vad, 512 * aa + 256 * u))
        return R
    entry_read("p2")
    jump_table(name + "_p2")
    for t in range(11):
        if t in (2, 4, 6, 8): a.label("%s_p2_%d" % (name, t))
        if t <= 9:
            a("s_waitcnt lgkmcnt(0)")
            if actA(t): a(smf(SA + 16 * (t & 1), t, QA, "v[%d:%d]" % (NMA, NMA + 15)))
            if actB(t): a(smf(SB + 16 * (t & 1), t, QB_, "v[%d:%d]" % (NMB, NMB + 15)))
            if t + 1 <= 9: a(kread(t + 1))
            for r in vreads(t): a(r)
            a("v_add_u32 v%d, v%d, v%d" % (vad, vad, vstep))
        p = t - 1
        if p >= 0:
            lab = None
            if t in (2, 4, 6, 8):
                lab = a.newlabel(name + "_s2"); a("s_cmp_eq_u32 s%d, %d" % (sTINV, t)); a("s_cbranch_scc1 %s" % lab)
            vb = VB + 8 * (p & 1)
            for (act, Sx, Px, Ox, told, tdiag) in ((actA, SA, PA, OA, 0, 8), (actB, SB, PB, OB, 1, 9)):
                if act(p):
                    b = Sx + 16 * (p & 1)
                    for r in range(16): a("v_exp_f32 v%d, v%d" % (b + r, b + r))
                    for q in range(8): a("v_cvt_pk_bf16_f32 v%d, v%d, v%d" % (Px + q, b + 2 * q, b + 2 * q + 1))
                    if p == told:
                        for q in range(8): a("v_and_b32 v%d, v%d, v%d" % (Px + q, Px + q, AO + q))
                    if p == tdiag:
                        for q in range(8): a("v_and_b32 v%d, v%d, v%d" % (Px + q, Px + q, AD + q))
                    if t > 9: a("s_waitcnt lgkmcnt(0)")
                    for aa in range(2):
                        a("v_mfma_f32_32x32x16_bf16 a[%d:%d], a[%d:%d], v[%d:%d], a[%d:%d]" % (Ox, Ox + 15, vb + 4 * aa, vb + 4 * aa + 3, Px + 4 * aa, Px + 4 * aa + 3, Ox, Ox + 15))
            if lab: a.label(lab)
    a("s_lshl_b32 s17, s23, 15"); a("s_lshl_b32 s18, s%d, 10" % sHEAD); a("s_add_u32 s17, s17, s18")
    a("s_add_u32 s17, s17, %s" % hex(OF)); a("s_add_u32 s18, s17, 32768")
    for (Ox, Px, so) in ((OA, PA, 17), (OB, PB, 18)):
        a("v_accvgpr_read_b32 v%d, a%d" % (t0, Ox + 8))
        a("v_rcp_f32 v%d, v%d" % (t0, t0))
        for r in range(8):
            a("v_accvgpr_read_b32 v%d, a%d" % (SA + r, Ox + r))
            a("v_mul_f32 v%d, v%d, v%d" % (SA + r, t0, SA + r))
        for q in range(4): a("v_cvt_pk_bf16_f32 v%d, v%d, v%d" % (Px + q, SA + 2 * q, SA + 2 * q + 1))
        a("buffer_store_dwordx4 v[%d:%d], v%d, s[%d:%d], s%d offen %s" % (Px, Px + 3, voff, sWS, sWS + 3, so, ST))
    a("s_waitcnt vmcnt(0)")
    a.label("%s_done" % name)
    a("s_endpgm")
    a.L = fix_hazards(a.L, True)
    return kernel_header(name) + a.text() + kernel_desc(name, 256 + 64, 256)
```

```python
from gen_common import *

def k3(name="k3_kernel"):
    a = Asm()
    V = Alloc(1, 256)
    sWS, sW2, sWO, sXR, sOUT = 8, 12, 16, 20, 24
    sW, sRB, sCT = 28, 29, 30
    sWM, sWN = 31, 32
    sM0A, sM0W = 33, 34
    sOH, sOO, sOW = 35, 36, 37
    lane = V("lane")
    voffL = V("voffL"); voffW = V("voffW", 2)
    aad = V("aad", 3); wad = V("wad", 3)
    AB = V("AB", 8, 4); WB = V("WB", 8, 4)
    accF = V("accF", 16, 4); accS = V("accS", 16, 4)
    xr = V("xr", 8, 4); rs = V("rs"); voffO = V("voffO")
    t0 = V("t", 20, 4); t1, t2, t3, t4, t5 = t0 + 1, t0 + 2, t0 + 3, t0 + 4, t0 + 5
    L = lane
    SLOT = 16384; NS = 9; NG = 36
    a("s_cmp_ge_u32 s2, 256"); a("s_cbranch_scc1 %s_done" % name)
    a("s_load_dwordx2 s[4:5], s[0:1], %d" % KA_WS)
    a("s_load_dwordx2 s[6:7], s[0:1], %d" % KA_W2)
    a("s_load_dwordx2 s[38:39], s[0:1], %d" % KA_WO)
    a("s_load_dwordx2 s[40:41], s[0:1], %d" % KA_X)
    a("s_load_dwordx2 s[42:43], s[0:1], %d" % KA_OUT)
    a("v_lshrrev_b32 v%d, 6, v0" % t0); a("v_and_b32 v%d, 63, v0" % lane)
    a("v_readfirstlane_b32 s%d, v%d" % (sW, t0))
    a("s_and_b32 s44, s2, 7"); a("s_lshr_b32 s45, s2, 3")
    a("s_lshl_b32 s44, s44, 2"); a("s_lshr_b32 s46, s45, 3"); a("s_add_u32 s%d, s44, s46" % sRB)
    a("s_and_b32 s%d, s45, 7" % sCT)
    a("s_and_b32 s%d, s%d, 1" % (sWM, sW)); a("s_lshr_b32 s%d, s%d, 1" % (sWN, sW))
    a("s_lshl_b32 s44, s%d, 2" % sWM); a("s_lshl_b32 s45, s%d, 1" % sWN); a("s_add_u32 s44, s44, s45")
    a("s_lshl_b32 s%d, s44, 10" % sM0A)
    a("s_lshl_b32 s44, s%d, 11" % sW); a("s_add_u32 s%d, s44, 8192" % sM0W)
    a("s_lshl_b32 s44, s%d, 1" % sRB); a("s_add_u32 s44, s44, s%d" % sWM)
    a("s_mul_i32 s45, s44, 112"); a("s_lshl_b32 s46, s%d, 1" % sWN); a("s_add_u32 s45, s45, s46")
    a("s_lshl_b32 s45, s45, 10"); a("s_add_u32 s%d, s45, %s" % (sOH, hex(HF)))
    a("s_lshl_b32 s45, s44, 5"); a("s_add_u32 s45, s45, s46")
    a("s_lshl_b32 s45, s45, 10"); a("s_add_u32 s%d, s45, %s" % (sOO, hex(OF)))
    a("s_lshl_b32 s%d, s%d, 14" % (sOW, sW))
    a("v_lshlrev_b32 v%d, 4, v%d" % (voffL, L))
    a("v_lshrrev_b32 v%d, 3, v%d" % (t0, L)); a("v_lshlrev_b32 v%d, 10, v%d" % (t0, t0))
    a("v_bfe_u32 v%d, v%d, 2, 1" % (t1, L)); a("v_bfe_u32 v%d, v%d, 4, 1" % (t2, L))
    a("v_xor_b32 v%d, v%d, v%d" % (t1, t1, t2)); a("v_lshlrev_b32 v%d, 6, v%d" % (t1, t1))
    a("v_add_u32 v%d, v%d, v%d" % (t0, t0, t1))
    a("v_and_b32 v%d, 3, v%d" % (t1, L)); a("v_lshlrev_b32 v%d, 4, v%d" % (t1, t1))
    a("v_add_u32 v%d, v%d, v%d" % (voffW, t0, t1))
    a("v_add_u32 v%d, 7168, v%d" % (voffW + 1, voffW))
    a("s_waitcnt lgkmcnt(0)")
    srd(a, sWS, "s4", "s5", WS_USED)
    a("s_lshl_b32 s44, s%d, 7" % sCT)
    for (sd, lo, rows) in ((sW2, 6, 1792), (sWO, 38, 512)):
        a("s_add_u32 s%d, s%d, s44" % (sd, lo)); a("s_addc_u32 s%d, s%d, 0" % (sd + 1, lo + 1))
        a("s_sub_u32 s%d, %d, s44" % (sd + 2, rows * 1024)); a("s_mov_b32 s%d, 0x20000" % (sd + 3))
    srd(a, sXR, "s40", "s41", 2048 * 1024)
    srd(a, sOUT, "s42", "s43", 2048 * 1024)

    def issue(g):
        base = (g % NS) * SLOT
        ffn = g < 28
        gg = g if ffn else g - 28
        a("s_add_u32 s44, s%d, %d" % (sOH if ffn else sOO, gg * 4096))
        a("s_add_u32 m0, s%d, %d" % (sM0A, base))
        a("s_add_u32 s45, s%d, %d" % (sOW, gg * 65536))
        for j in range(2):
            a.vmem("buffer_load_dwordx4 v%d, s[%d:%d], s44 offen offset:%d lds" % (voffL, sWS, sWS + 3, 1024 * j), ("g", g))
        a("s_add_u32 m0, s%d, %d" % (sM0W, base))
        sd = sW2 if ffn else sWO
        for t in range(2):
            a.vmem("buffer_load_dwordx4 v%d, s[%d:%d], s45 offen offset:%d lds" % (voffW + t, sd, sd + 3, 1024 * t), ("g", g))
    for g in range(NS - 1): issue(g)
    a("v_and_b32 v%d, 31, v%d" % (t0, L)); a("v_lshlrev_b32 v%d, 10, v%d" % (t1, t0))
    a("v_lshrrev_b32 v%d, 5, v%d" % (t2, L)); a("v_lshlrev_b32 v%d, 4, v%d" % (t2, t2))
    a("v_add_u32 v%d, v%d, v%d" % (voffO, t1, t2))
    a("s_lshl_b32 s46, s%d, 1" % sRB); a("s_add_u32 s46, s46, s%d" % sWM)
    a("s_lshl_b32 s47, s46, 15"); a("s_lshl_b32 s48, s%d, 7" % sCT); a("s_add_u32 s47, s47, s48")
    a("s_lshl_b32 s48, s%d, 6" % sWN); a("s_add_u32 s47, s47, s48")
    a.vmem("buffer_load_dwordx4 v[%d:%d], v%d, s[%d:%d], s47 offen" % (xr, xr + 3, voffO, sXR, sXR + 3), "x")
    a.vmem("buffer_load_dwordx4 v[%d:%d], v%d, s[%d:%d], s47 offen offset:32" % (xr + 4, xr + 7, voffO, sXR, sXR + 3), "x")
    a("s_lshl_b32 s48, s46, 7"); a("s_add_u32 s48, s48, %s" % hex(RSTD))
    a("v_lshlrev_b32 v%d, 2, v%d" % (t0, t0))
    a.vmem("buffer_load_dword v%d, v%d, s[%d:%d], s48 offen" % (rs, t0, sWS, sWS + 3), "x")
    a("s_lshl_b32 s44, s%d, 12" % sWM)
    a("v_add_u32 v%d, s44, v%d" % (aad, voffL))
    a("v_bfe_u32 v%d, v%d, 2, 2" % (t0, L)); a("v_lshrrev_b32 v%d, 5, v%d" % (t1, L))
    a("v_lshlrev_b32 v%d, 2, v%d" % (t1, t1)); a("v_add_u32 v%d, v%d, v%d" % (t1, t1, t0))
    a("v_lshlrev_b32 v%d, 7, v%d" % (t1, t1))
    a("v_lshrrev_b32 v%d, 1, v%d" % (t0, t0)); a("v_xor_b32 v%d, s%d, v%d" % (t0, sWN, t0)); a("v_lshlrev_b32 v%d, 6, v%d" % (t0, t0))
    a("v_add_u32 v%d, v%d, v%d" % (t1, t1, t0))
    a("v_bfe_u32 v%d, v%d, 4, 1" % (t0, L)); a("v_lshlrev_b32 v%d, 5, v%d" % (t0, t0)); a("v_add_u32 v%d, v%d, v%d" % (t1, t1, t0))
    a("v_and_b32 v%d, 3, v%d" % (t0, L)); a("v_lshlrev_b32 v%d, 3, v%d" % (t0, t0)); a("v_add_u32 v%d, v%d, v%d" % (t1, t1, t0))
    a("v_add_u32 v%d, 8192, v%d" % (wad, t1))
    for rg in (1, 2):
        a("v_add_u32 v%d, %d, v%d" % (aad + rg, 49152 * rg, aad)); a("v_add_u32 v%d, %d, v%d" % (wad + rg, 49152 * rg, wad))
    def reads(st):
        g = st >> 2; sp = st & 3; slot = g % NS; rg = slot // 3; ib = (slot % 3) * SLOT
        b = st & 1
        return ["ds_read_b128 v[%d:%d], v%d offset:%d" % (AB + 4 * b, AB + 4 * b + 3, aad + rg, ib + sp * 1024),
                "ds_read_b64_tr_b16 v[%d:%d], v%d offset:%d" % (WB + 4 * b, WB + 4 * b + 1, wad + rg, ib + sp * 2048),
                "ds_read_b64_tr_b16 v[%d:%d], v%d offset:%d" % (WB + 4 * b + 2, WB + 4 * b + 3, wad + rg, ib + sp * 2048 + 1024)]
    a.vm_wait(("g", 0)); a("s_barrier")
    issue(NS - 1)
    for r in reads(0): a.lds(r, ("rd", 0))
    NST = NG * 4
    for st in range(NST):
        nxt = st + 1
        a.lg_wait(("rd", st))
        if nxt < NST and (nxt & 3) == 0:
            g = nxt >> 2
            a.vm_wait(("g", g)); a("s_barrier")
            if g + NS - 1 < NG: issue(g + NS - 1)
        if nxt < NST:
            for r in reads(nxt): a.lds(r, ("rd", nxt))
        acc = accF if st < 112 else accS
        first = st in (0, 112)
        b = st & 1
        a("v_mfma_f32_32x32x16_bf16 v[%d:%d], v[%d:%d], v[%d:%d], %s" % (acc, acc + 15, WB + 4 * b, WB + 4 * b + 3, AB + 4 * b, AB + 4 * b + 3, "0" if first else "v[%d:%d]" % (acc, acc + 15)))
    a.vm_wait_all()
    for r in range(16):
        a("v_mul_f32 v%d, v%d, v%d" % (accF + r, rs, accF + r))
    for r in range(16):
        a("v_mul_f32 v%d, %s, v%d" % (t0 + r % 4, hex(f32bits(-1.4426950408889634)), accF + r))
        a("v_exp_f32 v%d, v%d" % (t0 + r % 4, t0 + r % 4))
        a("v_add_f32 v%d, 1.0, v%d" % (t0 + r % 4, t0 + r % 4))
        a("v_rcp_f32 v%d, v%d" % (t0 + r % 4, t0 + r % 4))
        a("v_mul_f32 v%d, v%d, v%d" % (accF + r, t0 + r % 4, accF + r))
        a("v_mul_f32 v%d, v%d, v%d" % (accS + r, accF + r, accS + r))
    for qp in range(2):
        for e in range(4):
            a("v_permlane32_swap_b32 v%d, v%d" % (accS + 8 * qp + e, accS + 8 * qp + 4 + e))
    for qp in range(2):
        for d in range(4):
            xv = xr + 4 * qp + d
            r0 = accS + 8 * qp + 2 * d
            a("v_lshlrev_b32 v%d, 16, v%d" % (t0, xv)); a("v_and_b32 v%d, 0xffff0000, v%d" % (t1, xv))
            a("v_add_f32 v%d, v%d, v%d" % (t0, t0, r0)); a("v_add_f32 v%d, v%d, v%d" % (t1, t1, r0 + 1))
            a("v_cvt_pk_bf16_f32 v%d, v%d, v%d" % (xv, t0, t1))
        a("buffer_store_dwordx4 v[%d:%d], v%d, s[%d:%d], s47 offen offset:%d" % (xr + 4 * qp, xr + 4 * qp + 3, voffO, sOUT, sOUT + 3, 32 * qp))
    a("s_waitcnt vmcnt(0)")
    a.label("%s_done" % name)
    a("s_endpgm")
    a.L = fix_hazards(a.L, True)
    return kernel_header(name) + a.text() + kernel_desc(name, 256, 256)
```

```python
import sys
sys.path.insert(0, 'dev')
from gen_k1 import k1
from gen_k2 import k2
from gen_k3 import k3
NAME = "recurrent_scan__sliding_block__dense_activation_relu__prompt"
def build(extra_launch=""):
    hdr = """; generated by dev/gen_v1.py (own generator)
; @launch kernel=k1_kernel grid=(256,1,1) block=(256,1,1) lds=163840
; @launch kernel=k2_kernel grid=(256,1,1) block=(256,1,1) lds=33792
; @launch kernel=k3_kernel grid=(256,1,1) block=(256,1,1) lds=147456
""" + extra_launch + """.amdgcn_target "amdgcn-amd-amdhsa--gfx950"
.text
"""
    return hdr + k1() + k2() + k3()
if __name__ == "__main__":
    out = sys.argv[1] if len(sys.argv) > 1 else "cdna_kernels/%s.s" % NAME
    open(out, "w").write(build())
    print("wrote", out)
```

```python
class Asm:
    def __init__(self):
        self.L = []
        self.vm = []
        self.lg = []
        self.uid = 0
    def __call__(self, s):
        for ln in s.strip("\n").split("\n"):
            self.L.append(ln.strip())
    def c(self, s): self.L.append("; " + s)
    def label(self, name): self.L.append(name + ":")
    def newlabel(self, p="L"):
        self.uid += 1
        return "%s_%d" % (p, self.uid)
    def vmem(self, s, tag=None):
        self(s); self.vm.append(tag)
    def vm_wait(self, tag):
        idx = [i for i, t in enumerate(self.vm) if t == tag]
        if not idx: return
        last = idx[-1]
        n = len(self.vm) - 1 - last
        assert n <= 63, n
        self("s_waitcnt vmcnt(%d)" % n)
        self.vm = self.vm[last + 1:]
    def vm_wait_all(self):
        self("s_waitcnt vmcnt(0)"); self.vm = []
    def lds(self, s, tag=None):
        self(s); self.lg.append(tag)
    def lg_wait(self, tag):
        idx = [i for i, t in enumerate(self.lg) if t == tag]
        if not idx: return
        last = idx[-1]
        n = len(self.lg) - 1 - last
        if n > 15: n = 15
        self("s_waitcnt lgkmcnt(%d)" % n)
        self.lg = self.lg[len(self.lg) - n:] if n else []
    def lg_wait_all(self):
        self("s_waitcnt lgkmcnt(0)"); self.lg = []
    def text(self): return "\n".join(self.L) + "\n"

def vr(a, n=1): return "v%d" % a if n == 1 else "v[%d:%d]" % (a, a + n - 1)
def ar(a, n=1): return "a%d" % a if n == 1 else "a[%d:%d]" % (a, a + n - 1)
def sr(a, n=1): return "s%d" % a if n == 1 else "s[%d:%d]" % (a, a + n - 1)

class Alloc:
    def __init__(self, start, limit):
        self.p = start; self.limit = limit; self.names = {}
    def __call__(self, name, n=1, align=1):
        while self.p % align: self.p += 1
        r = self.p; self.p += n
        assert self.p <= self.limit, (name, self.p, self.limit)
        self.names[name] = (r, n)
        return r

def kernel_header(name):
    return ".globl %s\n.p2align 8\n.type %s,@function\n%s:\n" % (name, name, name)
def kernel_desc(name, vgpr, accum, sgpr=102):
    return """.section .rodata,"a"
.p2align 6
.amdhsa_kernel %s
  .amdhsa_next_free_vgpr %d
  .amdhsa_next_free_sgpr %d
  .amdhsa_accum_offset %d
  .amdhsa_group_segment_fixed_size 0
  .amdhsa_kernarg_size 72
  .amdhsa_user_sgpr_count 2
  .amdhsa_user_sgpr_kernarg_segment_ptr 1
  .amdhsa_system_sgpr_workgroup_id_x 1
  .amdhsa_float_denorm_mode_32 3
.end_amdhsa_kernel
.text
""" % (name, vgpr, sgpr, accum)

import re
_REG = re.compile(r"\b([vas])\[(\d+):(\d+)\]|\b([vas])(\d+)\b")
def _regs(tok):
    out = []
    for m in _REG.finditer(tok):
        if m.group(1):
            out += [(m.group(1), i) for i in range(int(m.group(2)), int(m.group(3)) + 1)]
        else:
            out.append((m.group(4), int(m.group(5))))
    return out
TRANS = ("v_exp_f32", "v_log_f32", "v_rcp_f32", "v_rsq_f32", "v_sqrt_f32", "v_sin_f32", "v_cos_f32")
def parse(line):
    s = line.split(";")[0].strip()
    if not s or s.endswith(":") or s.startswith("."): return None
    parts = s.split(None, 1)
    op = parts[0]; rest = parts[1] if len(parts) > 1 else ""
    ops = [x.strip() for x in rest.split(",")] if rest else []
    d = dict(op=op, dst=[], src=[], kind="other", text=s)
    if op.startswith("v_mfma"):
        d["kind"] = "mfma"; d["dst"] = _regs(ops[0]); d["A"] = _regs(ops[1]); d["B"] = _regs(ops[2]); d["C"] = _regs(ops[3].split()[0])
        d["src"] = d["A"] + d["B"] + d["C"]
        d["passes"] = 8 if "32x32" in op else 4
    elif op.startswith("v_cmp"):
        d["kind"] = "valu"; d["dst"] = _regs(ops[0]) if ops[0] != "vcc" else [("s", 106), ("s", 107)]
        d["src"] = sum((_regs(x) for x in ops[1:]), [])
    elif op.startswith("v_permlane") and "swap" in op:
        d["kind"] = "valu"; d["dst"] = _regs(ops[0]) + _regs(ops[1]); d["src"] = list(d["dst"]); d["perm"] = True
    elif op in ("v_readfirstlane_b32", "v_readlane_b32"):
        d["kind"] = "valu"; d["dst"] = _regs(ops[0]); d["src"] = sum((_regs(x) for x in ops[1:]), []); d["rdlane"] = True
    elif op.startswith("v_"):
        d["kind"] = "valu"; d["dst"] = _regs(ops[0]); d["src"] = sum((_regs(x) for x in ops[1:]), [])
        if op.startswith(("v_fmac", "v_dot2c", "v_pk_fmac")): d["src"] += d["dst"]
        if "vcc" in rest:
            if op.startswith(("v_cndmask", "v_addc", "v_subb")): d["src"] += [("s", 106), ("s", 107)]
            if op.startswith(("v_add_co", "v_sub_co", "v_addc", "v_subb")): d["dst"] += [("s", 106), ("s", 107)]
        if "dpp" in op or "row_" in rest or "quad_perm" in rest: d["dpp"] = True
        if op.replace("_e32", "").replace("_e64", "") in TRANS: d["trans"] = True
    elif op.startswith("ds_"):
        d["kind"] = "ds"
        if op.startswith("ds_read") or op.startswith("ds_bpermute") or op.startswith("ds_swizzle"):
            d["dst"] = _regs(ops[0]); d["src"] = sum((_regs(x.split()[0]) for x in ops[1:]), [])
        else:
            d["src"] = sum((_regs(x.split()[0]) for x in ops), [])
    elif op.startswith(("buffer_", "global_")):
        d["kind"] = "vmem"
        isld = "load" in op and " lds" not in (" " + rest)
        allr = [_regs(x.split()[0]) if x else [] for x in ops]
        if isld:
            d["dst"] = allr[0]; d["src"] = sum(allr[1:], [])
        else:
            d["src"] = sum(allr, [])
        if "store" in op and ("x4" in op or "x3" in op):
            d["widestore"] = allr[0] if op.startswith("buffer_") else allr[1]
        if " lds" in (" " + rest): d["ldsdma"] = True
    elif op.startswith("s_"):
        d["kind"] = "salu"
        if op == "s_nop": d["nop"] = int(ops[0], 0) + 1
        if ops and ops[0] == "m0" and not op.startswith("s_cmp"): d["m0w"] = True
        if op.startswith(("s_cbranch", "s_branch")): d["branch"] = ops[0]
    return d
def fix_hazards(lines, verbose=False):
    labels = {}
    for i, l in enumerate(lines):
        s = l.split(";")[0].strip()
        if s.endswith(":"): labels[s[:-1]] = i
    P = [parse(l) for l in lines]
    out = []
    hist = []
    skip_until = -1
    nins = 0
    cur = [0]
    def dist_since(pred):
        n = 0
        for p, w, rg in reversed(hist):
            if pred(p): return n
            if rg == 0 or rg == cur[0]: n += w
            if n > 24: return None
        return None
    for i, (l, p) in enumerate(zip(lines, P)):
        if p is None:
            out.append(l); continue
        need = 0
        cur[0] = skip_until if i <= skip_until else 0
        S = set(p["src"]); Dd = set(p["dst"])
        def req(pred, n):
            nonlocal need
            d = dist_since(pred)
            if d is not None and d < n: need = max(need, n - d)
        k = p["kind"]
        if k in ("valu", "ds", "vmem"):
            touch = S | (Dd if k in ("valu", "ds", "vmem") else set())
            req(lambda q: q["kind"] == "mfma" and q["passes"] == 8 and set(q["dst"]) & touch, 12)
            req(lambda q: q["kind"] == "mfma" and q["passes"] == 4 and set(q["dst"]) & touch, 8)
        if k == "valu":
            req(lambda q: q["kind"] == "mfma" and q["passes"] == 8 and set(q["C"]) & Dd, 7)
            req(lambda q: q["kind"] == "mfma" and q["passes"] == 4 and set(q["C"]) & Dd, 3)
            if not p.get("trans"): req(lambda q: q.get("trans") and set(q["dst"]) & S, 1)
            if p.get("perm") or p.get("dpp"): req(lambda q: q["kind"] == "valu" and set(q["dst"]) & S, 2)
            if p.get("rdlane"): req(lambda q: q["kind"] == "valu" and set(q["dst"]) & S, 1)
            req(lambda q: q["kind"] == "valu" and any(r[0] == "s" and r in S for r in q["dst"]), 2)
            req(lambda q: q.get("widestore") and set(q["widestore"]) & Dd, 2)
        if k == "mfma":
            ab = set(p["A"]) | set(p["B"]); c = set(p["C"])
            req(lambda q: q["kind"] == "valu" and set(q["dst"]) & S, 2)
            req(lambda q: q["kind"] == "mfma" and q["passes"] == 8 and set(q["dst"]) & ab, 12)
            req(lambda q: q["kind"] == "mfma" and q["passes"] == 4 and set(q["dst"]) & ab, 8)
            req(lambda q: q["kind"] == "mfma" and q["passes"] == 8 and set(q["dst"]) & c and not (q["dst"] == p["C"] and q["passes"] == p["passes"]), 10)
            req(lambda q: q["kind"] == "mfma" and q["passes"] == 4 and set(q["dst"]) & c and not (q["dst"] == p["C"] and q["passes"] == p["passes"]), 6)
            req(lambda q: q["kind"] == "mfma" and set(q["dst"]) & Dd and not (q["dst"] == p["C"]) , 10)
        if k == "vmem":
            req(lambda q: q["kind"] == "valu" and any(r[0] == "s" and r in S for r in q["dst"]), 5)
            if p.get("ldsdma"): req(lambda q: q.get("m0w"), 1)
        if need:
            nins += 1
            n = need
            while n > 0:
                m = min(n, 16)
                out.append("s_nop %d" % (m - 1)); n -= m
            hist.append((dict(kind="salu", op="s_nop", dst=[], src=[]), need, cur[0]))
        out.append(l)
        w = p.get("nop", 1)
        hist.append((p, w, cur[0]))
        if p.get("branch") and p["branch"] in labels and labels[p["branch"]] > i and not p["branch"].endswith("_done") and "noskip" not in l:
            skip_until = max(skip_until, labels[p["branch"]])
        if len(hist) > 160: hist = hist[-120:]
    if verbose: print("hazard pads inserted:", nins)
    return out
```

```python
from asmlib import *
S, D, H, DH, DFF = 2048, 512, 32, 16, 1792
QF = 0
KF = 2 << 20
VF = 4 << 20
HF = 6 << 20
OF = 13 << 20
RSTD = 15 << 20
WS_USED = 16 << 20
KA_X, KA_WQKV, KA_WO, KA_BX, KA_W1, KA_W2, KA_OUT, KA_DBG, KA_WS = 0, 8, 16, 24, 32, 40, 48, 56, 64
CEXP = 0.25 * 1.4426950408889634
import struct
def f32bits(x): return struct.unpack("<I", struct.pack("<f", x))[0]
def srd(a, s, base_lo, base_hi, size):
    a("s_mov_b32 s%d, %s" % (s, base_lo))
    a("s_mov_b32 s%d, %s" % (s + 1, base_hi))
    a("s_mov_b32 s%d, %s" % (s + 2, size if isinstance(size, str) else hex(size)))
    a("s_mov_b32 s%d, 0x20000" % (s + 3))
ST = "sc1"

STAMP = False
STAMP_SET = None
STAMP_OP = 's_memrealtime'
STAMP_BASE = 32 << 20
class Stamps:
    def __init__(self, a, kidx, s0=70):
        self.a, self.k, self.s0, self.n = a, kidx, s0, 0
        self.names = []
    def __call__(self, name):
        if not STAMP: return
        if STAMP_SET is not None and name not in STAMP_SET: return
        assert self.n < 16
        self.a("%s s[%d:%d]" % (STAMP_OP, self.s0 + 2 * self.n, self.s0 + 2 * self.n + 1))
        self.names.append(name); self.n += 1
    def flush(self, ws_lo, ws_hi, wave_s, vt):
        if not STAMP: return
        a = self.a
        lab = a.newlabel("stamp_skip")
        a("s_waitcnt lgkmcnt(0)")
        a("s_cmp_lg_u32 s%d, 0" % wave_s); a("s_cbranch_scc1 %s" % lab)
        a("s_add_u32 s22, s%d, %d" % (ws_lo, STAMP_BASE + self.k * 65536)); a("s_addc_u32 s23, s%d, 0" % ws_hi)
        a("s_lshl_b32 s21, s2, 7")
        a("v_mov_b32 v%d, s21" % vt)
        a("s_mov_b64 exec, 1")
        for i in range(self.n):
            a("v_mov_b32 v%d, s%d" % (vt + 1, self.s0 + 2 * i))
            a("global_store_dword v%d, v%d, s[22:23] offset:%d" % (vt, vt + 1, 4 * i))
            a("s_nop 1")
        a("s_waitcnt vmcnt(0)")
        a.label(lab)
```

```python
import sys
sys.path.insert(0, 'dev')
import gen_common
from gen_common import *
NAME = "recurrent_scan__sliding_block__dense_activation_relu__prompt"
KNAME = NAME + "_kernel"
NEG = -1.0e30
FL = 15 * (1 << 20) + (64 << 10)
F2 = FL
F3 = FL + 8192
F4 = FL + 16384
EPO = FL + 32768 + 4096
SC1 = "sc1"
SPIN = 20000
OPT = dict(wpf=False, htouch=True, wpf2=True, touch0=True)

sLIGHT = 3; sWS = 4; sXP, sW2P, sWOP, sOUTP = 8, 10, 12, 14
sW, sTAG, sG, sSLOT = 16, 17, 18, 19
sHEAD, sQB, sF3 = 28, 29, 30
L = 1

class K:
    def __init__(self, stamp):
        gen_common.STAMP = stamp
        self.a = Asm()
        self.st = gen_common.Stamps(self.a, 0)

    def flag_store(self, soff, t0, t1, cond_wave0=True):
        a = self.a
        lab = None
        if cond_wave0:
            lab = a.newlabel("nofl"); a("s_cmp_lg_u32 s%d, 0" % sW); a("s_cbranch_scc1 %s" % lab)
        a("v_mov_b32 v%d, s%d" % (t0, sTAG)); a("v_mov_b32 v%d, 0" % t1)
        a("s_mov_b64 exec, 1")
        a("buffer_store_dword v%d, v%d, s[%d:%d], s%d offen %s" % (t0, t1, sWS, sWS + 3, soff, SC1))
        a("s_mov_b64 exec, -1")
        if lab: a.label(lab)
    def check_flags(self, pol, polad, soff):
        a = self.a
        ok = a.newlabel("fok"); loop = a.newlabel("fl")
        a("s_mov_b32 s21, %d" % SPIN)
        a.label(loop)
        a("v_cmp_ne_u32 vcc, s%d, v%d" % (sTAG, pol))
        a("s_cbranch_vccz %s" % ok)
        a("s_sub_u32 s21, s21, 1"); a("s_cmp_eq_u32 s21, 0"); a("s_cbranch_scc1 %s" % ok)
        a("s_sleep 1")
        a("buffer_load_dword v%d, v%d, s[%d:%d], s%d offen %s" % (pol, polad, sWS, sWS + 3, soff, SC1))
        a("s_waitcnt vmcnt(0)")
        a("s_branch %s ; noskip" % loop)
        a.label(ok)

    def phase_ab(self):
        a, st = self.a, self.st
        a("s_cmp_ge_u32 s2, 256"); a("s_cbranch_scc1 %s_done" % KNAME)
        st("start")
        a("s_load_dwordx4 s[20:23], s[0:1], %d" % KA_X)
        a("s_load_dwordx2 s[12:13], s[0:1], %d" % KA_WO)
        a("s_load_dwordx4 s[24:27], s[0:1], %d" % KA_W1)
        a("s_load_dwordx2 s[14:15], s[0:1], %d" % KA_OUT)
        a("s_load_dwordx2 s[4:5], s[0:1], %d" % KA_WS)
        a("v_lshrrev_b32 v2, 6, v0"); a("v_and_b32 v%d, 63, v0" % L)
        a("v_readfirstlane_b32 s%d, v2" % sW)
        a("s_and_b32 s%d, s2, 7" % sG); a("s_lshr_b32 s%d, s2, 3" % sSLOT)
        V = Alloc(2, 256)
        sX, sWA, sWB = 32, 36, 40
        sRB, sCG = 44, 45
        sM0X, sM0A, sOX, sOA, sOB, sTILE, sL0 = 46, 47, 48, 49, 50, 51, 53
        sFA, sFB = 54, 58
        voffX = V("voffX", 4); voffA = V("voffA", 3); voffB = V("voffB", 4)
        xad = V("xad", 12); aad = V("aad", 9); bad = V("bad", 12)
        sel = V("sel", 4, 4); RS = V("RS", 4, 4); CSA = V("CS", 4, 4)
        WB = V("WB", 32, 4)
        accB = V("accB", 64, 4); accA = V("accA", 48, 4); G = V("gram", 16, 4)
        tmp = V("tmp", 16, 4)
        mean2 = V("mean2", 2, 2); sc2 = V("sc2", 2, 2); rstd = V("rstd"); voffQK = V("voffQK"); voffV = V("voffV")
        csw = V("csw"); csr = V("csr"); dummy = V("dummy")
        XA = 0; SLOT = 28672; CS_LDS = 148480
        t0, t1, t2, t3, t4, t5 = [tmp + i for i in range(6)]
        a("s_and_b32 s62, s%d, 1" % sG); a("s_lshl_b32 s62, s62, 3"); a("s_and_b32 s63, s%d, 7" % sSLOT); a("s_add_u32 s%d, s62, s63" % sRB)
        a("s_lshr_b32 s62, s%d, 1" % sG); a("s_lshl_b32 s62, s62, 2"); a("s_lshr_b32 s63, s%d, 3" % sSLOT); a("s_add_u32 s%d, s62, s63" % sCG)
        a("s_lshl_b32 s%d, s%d, 12" % (sM0X, sW))
        a("s_mul_i32 s%d, s%d, 3072" % (sM0A, sW)); a("s_add_u32 s%d, s%d, 16384" % (sM0A, sM0A))
        a("s_lshl_b32 s%d, s%d, 15" % (sOX, sW))
        a("s_mul_i32 s%d, s%d, 49152" % (sOA, sW)); a("s_mul_i32 s%d, s%d, 57344" % (sOB, sW))
        a("s_lshl_b32 s%d, s%d, 2" % (sTILE, sRB)); a("s_add_u32 s%d, s%d, s%d" % (sTILE, sTILE, sW))
        a("v_lshrrev_b32 v%d, 3, v%d" % (t0, L)); a("v_lshlrev_b32 v%d, 10, v%d" % (t0, t0))
        a("v_and_b32 v%d, 7, v%d" % (t1, L)); a("v_bfe_u32 v%d, v%d, 4, 2" % (t2, L)); a("v_xor_b32 v%d, v%d, v%d" % (t1, t1, t2))
        for j in range(4):
            a("v_xor_b32 v%d, %d, v%d" % (t3, 4 * (j & 1), t1)); a("v_lshlrev_b32 v%d, 4, v%d" % (t3, t3))
            a("v_add_u32 v%d, v%d, v%d" % (t3, t3, t0)); a("v_add_u32 v%d, %d, v%d" % (voffX + j, 7168 * j, t3))
        a("s_mov_b32 s62, 43691")
        for t in range(3):
            a("v_add_u32 v%d, %d, v%d" % (t0, 64 * t, L)); a("v_mul_u32_u24 v%d, s62, v%d" % (t1, t0)); a("v_lshrrev_b32 v%d, 19, v%d" % (t1, t1))
            a("v_mul_u32_u24 v%d, 12, v%d" % (t2, t1)); a("v_sub_u32 v%d, v%d, v%d" % (t2, t0, t2)); a("v_lshlrev_b32 v%d, 4, v%d" % (t2, t2))
            a("v_mul_u32_u24 v%d, 0xc00, v%d" % (t1, t1)); a("v_add_u32 v%d, v%d, v%d" % (t1, t1, t2)); a("v_subrev_u32 v%d, %d, v%d" % (voffA + t, 1024 * t, t1))
        a("s_waitcnt lgkmcnt(0)")
        a("s_lshl_b32 s62, s%d, 17" % sRB)
        a("s_add_u32 s%d, s20, s62" % sX); a("s_addc_u32 s%d, s21, 0" % (sX + 1)); a("s_mov_b32 s%d, 0x20000" % (sX + 2)); a("s_mov_b32 s%d, 0x20000" % (sX + 3))
        a("s_mul_i32 s62, s%d, 192" % sCG)
        a("s_add_u32 s%d, s22, s62" % sWA); a("s_addc_u32 s%d, s23, 0" % (sWA + 1)); a("s_sub_u32 s%d, %d, s62" % (sWA + 2, 512 * 3072)); a("s_mov_b32 s%d, 0x20000" % (sWA + 3))

        def dma_list(i):
            base = (i % 5) * SLOT; kb = i & 7; out = []
            if i < 8:
                pre = ["s_add_u32 s100, s%d, %d" % (sOX, kb * 128), "s_add_u32 m0, s%d, %d" % (sM0X, base)]
                for j in range(4):
                    out.append((pre if j == 0 else [], "buffer_load_dwordx4 v%d, s[%d:%d], s100 offen offset:%d lds" % (voffX + j, sX, sX + 3, 1024 * j)))
                pre = ["s_add_u32 s101, s%d, %d" % (sOA, kb * 196608), "s_add_u32 m0, s%d, %d" % (sM0A, base)]
                for t in range(3):
                    out.append((pre if t == 0 else [], "buffer_load_dwordx4 v%d, s[%d:%d], s101 offen offset:%d lds" % (voffA + t, sWA, sWA + 3, 1024 * t)))
            else:
                pre = ["s_add_u32 s101, s%d, %d" % (sOB, kb * 229376), "s_add_u32 m0, s%d, %d" % (sM0X, base)]
                for t in range(4):
                    out.append((pre if t == 0 else [], "buffer_load_dwordx4 v%d, s[%d:%d], s101 offen offset:%d lds" % (voffB + t, sWB, sWB + 3, 1024 * t)))
            return out
        def emit_dma(item, ent):
            for p in ent[0]: a(p)
            a.vmem(ent[1], ("item", item))
        if OPT["touch0"]:
            cgl, cgq = 62, 63
            a("s_lshr_b32 s62, s%d, 3" % sSLOT)
            a("v_and_b32 v%d, 31, v%d" % (t0, L)); a("s_lshl_b32 s63, s62, 5"); a("v_add_u32 v%d, s63, v%d" % (t0, t0)); a("v_lshlrev_b32 v%d, 10, v%d" % (t0, t0))
            a("v_lshrrev_b32 v%d, 5, v%d" % (t1, L)); a("v_lshlrev_b32 v%d, 7, v%d" % (t1, t1)); a("v_add_u32 v%d, v%d, v%d" % (t0, t0, t1))
            a("s_lshl_b32 s63, s%d, 8" % sW)
            a.vmem("buffer_load_dword v%d, v%d, s[%d:%d], s63 offen" % (dummy, t0, sX, sX + 3), "pf")
            a("s_and_b32 s64, s%d, 1" % sW); a("s_lshl_b32 s64, s64, 6"); a("v_add_u32 v%d, s64, v%d" % (t0, L))
            a("s_lshr_b32 s65, s%d, 1" % sG)
            labB = a.newlabel("tB"); labE = a.newlabel("tE")
            a("s_cmp_ge_u32 s%d, 2" % sW); a("s_cbranch_scc1 %s" % labB)
            a("v_min_u32 v%d, 95, v%d" % (t0, t0))
            a("s_mov_b32 s66, 21846"); a("v_mul_u32_u24 v%d, s66, v%d" % (t1, t0)); a("v_lshrrev_b32 v%d, 18, v%d" % (t1, t1))
            a("v_mul_u32_u24 v%d, 12, v%d" % (t2, t1)); a("v_sub_u32 v%d, v%d, v%d" % (t2, t0, t2))
            a("s_mul_i32 s67, s%d, 12" % sSLOT); a("v_add_u32 v%d, s67, v%d" % (t2, t2))
            a("s_mov_b32 s66, 43691"); a("v_mul_u32_u24 v%d, s66, v%d" % (t3, t2)); a("v_lshrrev_b32 v%d, 18, v%d" % (t3, t3))
            a("v_mul_u32_u24 v%d, 6, v%d" % (t4, t3)); a("v_sub_u32 v%d, v%d, v%d" % (t4, t2, t4)); a("v_lshlrev_b32 v%d, 7, v%d" % (t4, t4))
            a("v_lshlrev_b32 v%d, 6, v%d" % (t1, t1)); a("v_add_u32 v%d, v%d, v%d" % (t1, t1, t3)); a("v_mul_u32_u24 v%d, 0xc00, v%d" % (t1, t1))
            a("v_add_u32 v%d, v%d, v%d" % (t0, t1, t4))
            a("s_mul_i32 s65, s65, 768"); a("s_add_u32 s66, s22, s65"); a("s_addc_u32 s67, s23, 0")
            a("s_branch %s ; noskip" % labE)
            a.label(labB)
            a("v_min_u32 v%d, 111, v%d" % (t0, t0))
            a("s_mov_b32 s66, 37450"); a("v_mul_u32_u24 v%d, s66, v%d" % (t1, t0)); a("v_lshrrev_b32 v%d, 18, v%d" % (t1, t1))
            a("v_mul_u32_u24 v%d, 7, v%d" % (t2, t1)); a("v_sub_u32 v%d, v%d, v%d" % (t2, t0, t2)); a("v_lshlrev_b32 v%d, 7, v%d" % (t2, t2))
            a("s_lshl_b32 s67, s%d, 4" % sSLOT); a("v_add_u32 v%d, s67, v%d" % (t1, t1)); a("v_mul_u32_u24 v%d, 0xe00, v%d" % (t1, t1))
            a("v_add_u32 v%d, v%d, v%d" % (t0, t1, t2))
            a("s_mul_i32 s65, s65, 896"); a("s_add_u32 s66, s24, s65"); a("s_addc_u32 s67, s25, 0")
            a.label(labE)
            a.vmem("global_load_dword v%d, v%d, s[66:67]" % (dummy, t0), "pf")
        startq = []
        for i in range(4): startq += [(i, e) for e in dma_list(i)]
        for _ in range(7):
            it, ent = startq.pop(0); emit_dma(it, ent)
        real = a.L; a.L = []
        a("s_mov_b32 s%d, %s" % (sWS + 2, hex(WS_USED))); a("s_mov_b32 s%d, 0x20000" % (sWS + 3))
        a("s_add_u32 s62, s4, %s" % hex(EPO)); a("s_addc_u32 s63, s5, 0")
        a("s_load_dword s%d, s[62:63], 0" % sTAG)
        a("s_mov_b32 s%d, s20" % sXP); a("s_mov_b32 s%d, s21" % (sXP + 1)); a("s_mov_b32 s%d, s26" % sW2P); a("s_mov_b32 s%d, s27" % (sW2P + 1))
        a("s_lshr_b32 s62, s%d, 2" % sCG); a("s_mul_i32 s62, s62, 7"); a("s_and_b32 s63, s%d, 3" % sCG)
        a("s_cmp_eq_u32 s63, 3"); a("s_cselect_b32 s%d, 1, 0" % sLIGHT)
        a("s_lshl_b32 s63, s63, 1"); a("s_add_u32 s%d, s62, s63" % sL0); a("s_lshl_b32 s62, s%d, 7" % sL0)
        a("s_add_u32 s%d, s24, s62" % sWB); a("s_addc_u32 s%d, s25, 0" % (sWB + 1)); a("s_sub_u32 s%d, %d, s62" % (sWB + 2, 512 * 3584)); a("s_mov_b32 s%d, 0x20000" % (sWB + 3))
        a("s_lshl_b32 s62, s%d, 8" % sRB); a("s_lshl_b32 s63, s%d, 4" % sCG); a("s_add_u32 s62, s62, s63"); a("s_lshl_b32 s63, s%d, 2" % sW); a("s_add_u32 s62, s62, s63")
        a("s_add_u32 s%d, s62, %s" % (sF3, hex(F3)))
        a("s_lshl_b32 s62, s%d, 2" % sG); a("s_and_b32 s63, s%d, 3" % sSLOT); a("s_add_u32 s%d, s62, s63" % sHEAD)
        a("s_lshr_b32 s%d, s%d, 2" % (sQB, sSLOT))
        a("v_lshrrev_b32 v%d, 4, v%d" % (t0, L)); a("v_mul_u32_u24 v%d, 0xe00, v%d" % (t1, t0))
        a("v_bfe_u32 v%d, v%d, 2, 2" % (t2, L)); a("v_xor_b32 v%d, v%d, v%d" % (t2, t2, t0)); a("v_lshlrev_b32 v%d, 6, v%d" % (t2, t2))
        a("v_add_u32 v%d, v%d, v%d" % (t1, t1, t2)); a("v_and_b32 v%d, 3, v%d" % (t2, L)); a("v_lshlrev_b32 v%d, 4, v%d" % (t2, t2))
        a("v_add_u32 v%d, v%d, v%d" % (t1, t1, t2))
        for t in range(4): a("v_add_u32 v%d, %d, v%d" % (voffB + t, 13312 * t, t1))
        a("v_and_b32 v%d, 31, v%d" % (t0, L))
        a("v_lshrrev_b32 v%d, 3, v%d" % (t1, t0)); a("v_lshlrev_b32 v%d, 10, v%d" % (t1, t1))
        a("v_and_b32 v%d, 7, v%d" % (t2, t0)); a("v_lshlrev_b32 v%d, 7, v%d" % (t2, t2)); a("v_add_u32 v%d, v%d, v%d" % (t1, t1, t2))
        a("v_bfe_u32 v%d, v%d, 1, 3" % (t2, t0)); a("v_lshrrev_b32 v%d, 5, v%d" % (t3, L))
        a("v_xor_b32 v%d, v%d, v%d" % (t2, t2, t3)); a("v_lshlrev_b32 v%d, 4, v%d" % (t2, t2)); a("v_add_u32 v%d, v%d, v%d" % (t1, t1, t2))
        a("v_add_u32 v%d, s%d, v%d" % (t1, sM0X, t1))
        for sp in range(4):
            a("v_xor_b32 v%d, %d, v%d" % (xad + sp, 32 * sp, t1))
            for rg in (1, 2): a("v_add_u32 v%d, %d, v%d" % (xad + 4 * rg + sp, 57344 * rg, xad + sp))
        r_, c_, nh_, hi_ = t0, t1, t2, t3
        a("v_bfe_u32 v%d, v%d, 2, 2" % (r_, L)); a("v_and_b32 v%d, 3, v%d" % (c_, L))
        a("v_bfe_u32 v%d, v%d, 4, 1" % (nh_, L)); a("v_lshrrev_b32 v%d, 5, v%d" % (hi_, L))
        a("v_lshlrev_b32 v%d, 3, v%d" % (t4, hi_)); a("v_add_u32 v%d, v%d, v%d" % (t4, t4, r_))
        a("v_lshlrev_b32 v%d, 5, v%d" % (nh_, nh_)); a("v_lshlrev_b32 v%d, 3, v%d" % (c_, c_)); a("v_add_u32 v%d, v%d, v%d" % (c_, c_, nh_))
        a("v_mul_u32_u24 v%d, 192, v%d" % (t5, t4)); a("v_add_u32 v%d, v%d, v%d" % (t5, t5, c_))
        for j in range(3):
            a("s_add_u32 s62, s%d, %d" % (sW, j))
            a("s_cmp_ge_u32 s62, 3"); a("s_cselect_b32 s63, 3, 0"); a("s_sub_u32 s62, s62, s63")
            a("s_cmp_ge_u32 s62, 3"); a("s_cselect_b32 s63, 3, 0"); a("s_sub_u32 s%d, s62, s63" % (sFA + j))
            a("s_lshl_b32 s62, s%d, 6" % (sFA + j)); a("s_add_u32 s62, s62, 16384")
            a("v_add_u32 v%d, s62, v%d" % (aad + j, t5))
            for rg in (1, 2): a("v_add_u32 v%d, %d, v%d" % (aad + 3 * rg + j, 57344 * rg, aad + j))
        a("v_lshlrev_b32 v%d, 8, v%d" % (t5, t4)); a("v_add_u32 v%d, v%d, v%d" % (t5, t5, c_))
        for j in range(4):
            a("s_add_u32 s62, s%d, %d" % (sW, j)); a("s_and_b32 s%d, s62, 3" % (sFB + j))
            a("v_xor_b32 v%d, s%d, v%d" % (t4, sFB + j, r_)); a("v_lshlrev_b32 v%d, 6, v%d" % (t4, t4)); a("v_add_u32 v%d, v%d, v%d" % (bad + j, t4, t5))
            for rg in (1, 2): a("v_add_u32 v%d, %d, v%d" % (bad + 4 * rg + j, 57344 * rg, bad + j))
        a("v_and_b32 v%d, 1, v%d" % (t4, L)); a("v_bfe_u32 v%d, v%d, 4, 1" % (t5, L))
        a("v_cmp_eq_u32 s[62:63], v%d, v%d" % (t4, t5))
        a("v_mov_b32 v%d, 0x3f803f80" % t4); a("v_mov_b32 v%d, 0" % t5)
        for q in range(4): a("v_cndmask_b32 v%d, v%d, v%d, s[62:63]" % (sel + q, t5, t4))
        a("v_and_b32 v%d, 1, v%d" % (t4, L)); a("v_lshlrev_b32 v%d, 6, v%d" % (t4, t4))
        a("v_lshrrev_b32 v%d, 4, v%d" % (t5, L)); a("v_lshlrev_b32 v%d, 4, v%d" % (t5, t5))
        a("v_add_u32 v%d, v%d, v%d" % (t4, t4, t5)); a("v_add_u32 v%d, %d, v%d" % (csw, CS_LDS, t4))
        a("v_lshrrev_b32 v%d, 5, v%d" % (t4, L)); a("v_lshlrev_b32 v%d, 4, v%d" % (t4, t4)); a("v_add_u32 v%d, %d, v%d" % (csr, CS_LDS, t4))
        a("v_lshlrev_b32 v%d, 4, v%d" % (voffQK, L))
        a("v_and_b32 v%d, 31, v%d" % (t4, L)); a("v_lshlrev_b32 v%d, 5, v%d" % (t4, t4))
        a("v_lshrrev_b32 v%d, 5, v%d" % (t5, L)); a("v_lshlrev_b32 v%d, 4, v%d" % (t5, t5)); a("v_add_u32 v%d, v%d, v%d" % (voffV, t4, t5))
        for k_, bit in enumerate((0, 1, 3, 4)):
            a("v_bfe_u32 v%d, v%d, %d, 1" % (t4, L, bit)); a("v_cmp_eq_u32 s[%d:%d], 1, v%d" % (62 + 2 * k_, 63 + 2 * k_, t4))
        setup_lines = a.L; a.L = real
        per = (len(setup_lines) + len(startq) - 1) // len(startq); p_ = 0
        while startq or p_ < len(setup_lines):
            for ln in setup_lines[p_:p_ + per]: a(ln)
            p_ += per
            if startq:
                it, ent = startq.pop(0); emit_dma(it, ent)
        a("s_getpc_b64 s[22:23]")
        a.label("Lpc0")
        a("v_lshlrev_b32 v%d, 7, v%d" % (t0, L)); a("s_lshl_b32 s20, s%d, 13" % sW); a("v_add_u32 v%d, s20, v%d" % (t0, t0))
        a("v_min_u32 v%d, Lend-Lpc0-4, v%d" % (t0, t0)); a("v_and_b32 v%d, 0xfffffffc, v%d" % (t0, t0))
        a.vmem("global_load_dword v%d, v%d, s[22:23]" % (dummy, t0), "pf")
        a("s_waitcnt lgkmcnt(0)")
        a("s_add_u32 s%d, s%d, 0x9e3779b9" % (sTAG, sTAG))

        def reads(tg, passB):
            item = (tg >> 2) + (8 if passB else 0); sp = tg & 3
            slot = item % 5; rg = slot // 2; ib = (slot % 2) * SLOT
            buf = WB + 16 * (tg & 1); R = []
            if not passB:
                R.append("ds_read_b128 a[%d:%d], v%d offset:%d" % (XA + 4 * tg, XA + 4 * tg + 3, xad + 4 * rg + sp, ib))
                for j in range(3):
                    for u in range(2):
                        R.append("ds_read_b64_tr_b16 v[%d:%d], v%d offset:%d" % (buf + 4 * j + 2 * u, buf + 4 * j + 2 * u + 1, aad + 3 * rg + j, ib + sp * 3072 + u * 768))
            else:
                for j in range(4):
                    for u in range(2):
                        R.append("ds_read_b64_tr_b16 v[%d:%d], v%d offset:%d" % (buf + 4 * j + 2 * u, buf + 4 * j + 2 * u + 1, bad + 4 * rg + j, ib + sp * 4096 + u * 1024))
            return R
        def mfmas(tg, passB):
            buf = WB + 16 * (tg & 1); xa = "a[%d:%d]" % (XA + 4 * tg, XA + 4 * tg + 3); M = []; first = (tg == 0)
            n = 4 if passB else 3; acc0 = accB if passB else accA
            for j in range(n):
                acc = "v[%d:%d]" % (acc0 + 16 * j, acc0 + 16 * j + 15)
                M.append("v_mfma_f32_32x32x16_bf16 %s, v[%d:%d], %s, %s" % (acc, buf + 4 * j, buf + 4 * j + 3, xa, "0" if first else acc))
            if not passB:
                g = "v[%d:%d]" % (G, G + 15)
                M.append("v_mfma_f32_32x32x16_bf16 %s, %s, %s, %s" % (g, xa, xa, "0" if first else g))
                rs = "v[%d:%d]" % (RS, RS + 3)
                M.append("v_mfma_f32_16x16x32_bf16 %s, v[%d:%d], %s, %s" % (rs, sel, sel + 3, xa, "0" if first else rs))
            cs = "v[%d:%d]" % (CSA, CSA + 3)
            M.append("v_mfma_f32_16x16x32_bf16 %s, v[%d:%d], v[%d:%d], %s" % (cs, buf, buf + 3, sel, sel + 3, "0" if first else cs))
            return M
        pend = []
        for i in range(4, 16): pend += [(i, e) for e in dma_list(i)]
        def run_pass(passB, hook=None):
            item0 = 8 if passB else 0; nf = 4 if passB else 3
            a.vm_wait(("item", item0)); a("s_barrier")
            if not passB: st("dataA")
            cur_bar = item0
            R0 = reads(0, passB)
            if not passB: a.lds(R0[0], ("rd", 0, 0)); R0 = R0[1:]
            for q in range(0, len(R0), 2):
                a.lds(R0[q], ("rd", 0, q // 2)); a.lds(R0[q + 1], ("rd", 0, q // 2))
            for tg in range(32):
                nxt = tg + 1
                boundary = nxt < 32 and (nxt & 3) == 0
                R = reads(nxt, passB) if nxt < 32 else []
                M = mfmas(tg, passB)
                if boundary:
                    a.lg_wait(("rd", tg, nf - 1))
                    cur_bar = item0 + (nxt >> 2)
                    a.vm_wait(("item", cur_bar)); a("s_barrier")
                    st("b%d" % cur_bar) if gen_common.STAMP_SET else None
                chunks = [[] for _ in M]; ri = 0
                if not passB and R: chunks[0].append((R[0], ("rd", nxt, 0))); ri = 1
                fr = 0; pos = 0
                while ri < len(R):
                    chunks[pos].append((R[ri], ("rd", nxt, fr))); chunks[pos].append((R[ri + 1], ("rd", nxt, fr)))
                    ri += 2; fr += 1
                    if len(chunks[pos]) >= 3: pos += 1
                ndma = 2
                for mi, m in enumerate(M):
                    if mi < nf: a.lg_wait(("rd", tg, mi))
                    a(m)
                    for (r, tag) in chunks[mi]: a.lds(r, tag)
                    if mi >= 2 and ndma and pend and pend[0][0] <= cur_bar + 4:
                        it, ent = pend.pop(0); emit_dma(it, ent); ndma -= 1
                    if boundary and hook and mi == 2: hook(cur_bar)
        run_pass(False)
        st("passA")
        a("s_lshl_b32 s20, s%d, 7" % sFA); a("v_add_u32 v%d, s20, v%d" % (t0, csw))
        a.lds("ds_write_b128 v%d, v[%d:%d]" % (t0, CSA, CSA + 3), "csw")
        a("v_cndmask_b32 v%d, v%d, v%d, s[68:69]" % (t1, RS, RS + 1))
        a("v_mul_f32 v%d, %s, v%d" % (t1, hex(f32bits(-1.0 / 512)), t1))
        a("v_mov_b32 v%d, v%d" % (mean2, t1)); a("v_mov_b32 v%d, v%d" % (mean2 + 1, t1))
        for q in range(4):
            b = G + 4 * q
            a("v_cndmask_b32 v%d, v%d, v%d, s[62:63]" % (b, b, b + 1)); a("v_cndmask_b32 v%d, v%d, v%d, s[62:63]" % (b + 2, b + 2, b + 3))
            a("v_cndmask_b32 v%d, v%d, v%d, s[64:65]" % (b, b, b + 2))
        a("v_cndmask_b32 v%d, v%d, v%d, s[66:67]" % (G, G, G + 4)); a("v_cndmask_b32 v%d, v%d, v%d, s[66:67]" % (G + 8, G + 8, G + 12))
        a("v_cndmask_b32 v%d, v%d, v%d, s[68:69]" % (t2, G, G + 8))
        a("v_mov_b32 v%d, v%d" % (t3, t2))
        a("v_bfe_u32 v%d, v%d, 2, 1" % (t4, L)); a("v_cmp_eq_u32 s[20:21], 1, v%d" % t4)
        a("v_permlane32_swap_b32 v%d, v%d" % (t2, t3))
        a("v_cndmask_b32 v%d, v%d, v%d, s[20:21]" % (t2, t2, t3))
        a("v_mul_f32 v%d, %s, v%d" % (t2, hex(f32bits(1.0 / 512)), t2))
        a("v_fma_f32 v%d, -v%d, v%d, v%d" % (t2, t1, t1, t2))
        a("v_max_f32 v%d, 0, v%d" % (t2, t2))
        a("v_cvt_pk_bf16_f32 v%d, v%d, v%d" % (t2, t2, t2)); a("v_lshlrev_b32 v%d, 16, v%d" % (t2, t2))
        a("v_add_f32 v%d, %s, v%d" % (t2, hex(f32bits(1e-5)), t2))
        a("v_cvt_pk_bf16_f32 v%d, v%d, v%d" % (t2, t2, t2)); a("v_lshlrev_b32 v%d, 16, v%d" % (t2, t2))
        a("v_sqrt_f32 v%d, v%d" % (t2, t2))
        a("v_cvt_pk_bf16_f32 v%d, v%d, v%d" % (t2, t2, t2)); a("v_lshlrev_b32 v%d, 16, v%d" % (t2, t2))
        a("v_rcp_f32 v%d, v%d" % (rstd, t2))
        skip = a.newlabel("nors")
        a("s_cmp_lg_u32 s%d, 0" % sCG); a("s_cbranch_scc1 %s" % skip)
        a("s_lshl_b32 s20, s%d, 7" % sTILE); a("s_add_u32 s20, s20, %s" % hex(RSTD))
        a("v_and_b32 v%d, 31, v%d" % (t1, L)); a("v_lshlrev_b32 v%d, 2, v%d" % (t1, t1))
        a("buffer_store_dword v%d, v%d, s[%d:%d], s20 offen %s" % (rstd, t1, sWS, sWS + 3, SC1))
        a.label(skip)
        a.lg_wait("csw"); a("s_barrier")
        def cs_reads(frag_s, lds_off, dst):
            a("s_lshl_b32 s20, s%d, 7" % frag_s); a("v_add_u32 v%d, s20, v%d" % (t0, csr))
            for q in range(4):
                a.lds("ds_read_b128 v[%d:%d], v%d offset:%d" % (dst + 4 * q, dst + 4 * q + 3, t0, lds_off + 32 * q), ("csr", dst))
        def epi_frag(acc, frag_s, cs, kindA):
            if kindA:
                a("s_mul_i32 s20, s%d, 3" % sCG); a("s_add_u32 s20, s20, s%d" % frag_s)
                a("s_and_b32 s21, s20, 15"); a("s_lshr_b32 s20, s20, 4")
                a("s_lshl_b32 s22, s20, 21"); a("s_lshl_b32 s21, s21, 17"); a("s_add_u32 s22, s22, s21")
                a("s_lshl_b32 s21, s%d, 10" % sTILE); a("s_add_u32 s22, s22, s21"); a("s_add_u32 s23, s22, 65536")
                a("s_cmp_eq_u32 s20, 0"); a("s_cselect_b32 s24, %s, 1.0" % hex(f32bits(CEXP)))
                a("s_cmp_eq_u32 s20, 2"); a("s_cselect_b64 s[26:27], -1, 0")
                a("v_mul_f32 v%d, s24, v%d" % (sc2, rstd)); a("v_mov_b32 v%d, v%d" % (sc2 + 1, sc2))
                a("v_cndmask_b32 v%d, v%d, v%d, s[26:27]" % (t2, voffQK, voffV))
            else:
                a("s_lshl_b32 s22, s%d, 2" % sL0); a("s_lshl_b32 s21, s%d, 1" % frag_s); a("s_add_u32 s22, s22, s21")
                a("s_mul_i32 s21, s%d, 112" % sTILE); a("s_add_u32 s22, s22, s21")
                a("s_lshl_b32 s22, s22, 10"); a("s_add_u32 s22, s22, %s" % hex(HF)); a("s_add_u32 s23, s22, 1024")
            a.lg_wait(("csr", cs))
            for r in range(0, 16, 2):
                a("v_pk_fma_f32 v[%d:%d], v[%d:%d], v[%d:%d], v[%d:%d]" % (acc + r, acc + r + 1, mean2, mean2 + 1, cs + r, cs + r + 1, acc + r, acc + r + 1))
            if kindA:
                for r in range(0, 16, 2):
                    a("v_pk_mul_f32 v[%d:%d], v[%d:%d], v[%d:%d]" % (acc + r, acc + r + 1, sc2, sc2 + 1, acc + r, acc + r + 1))
            for r in range(0, 16, 2): a("v_cvt_pk_bf16_f32 v%d, v%d, v%d" % (cs + r // 2, acc + r, acc + r + 1))
            if not kindA:
                for q in range(8): a("v_pk_max_i16 v%d, v%d, 0" % (cs + q, cs + q))
            vo = t2 if kindA else voffQK; lab = None
            if not kindA:
                lab = a.newlabel("nost")
                a("s_cmp_ge_u32 s%d, 2" % frag_s); a("s_cselect_b32 s21, s%d, 0" % sLIGHT); a("s_cmp_lg_u32 s21, 0"); a("s_cbranch_scc1 %s" % lab)
            a("buffer_store_dwordx4 v[%d:%d], v%d, s[%d:%d], s22 offen %s" % (cs, cs + 3, vo, sWS, sWS + 3, SC1))
            a("buffer_store_dwordx4 v[%d:%d], v%d, s[%d:%d], s23 offen %s" % (cs + 4, cs + 7, vo, sWS, sWS + 3, SC1))
            if lab: a.label(lab)
            if kindA: a.vm.append("st"); a.vm.append("st")
        for j in range(3): cs_reads(sFA + j, 0, accB + 16 * j)
        for j in range(3): epi_frag(accA + 16 * j, sFA + j, accB + 16 * j, True)
        if OPT["wpf"]:
            for k_ in range(2):
                for ln in ["s_add_u32 s20, s%d, %d" % (sW, 4 * k_), "s_lshl_b32 s21, s20, 13", "s_mul_i32 s22, s%d, 57344" % sSLOT, "s_add_u32 s21, s21, s22",
                           "s_lshl_b32 s22, s%d, 14" % sSLOT, "s_cmp_eq_u32 s20, 7", "s_cselect_b32 s21, s22, s21",
                           "s_cselect_b32 s22, s%d, s%d" % (sWOP, sW2P), "s_cselect_b32 s23, s%d, s%d" % (sWOP + 1, sW2P + 1),
                           "v_lshlrev_b32 v%d, 7, v%d" % (t0, L), "v_add_u32 v%d, s21, v%d" % (t0, t0)]: a(ln)
                a.vmem("global_load_dword v%d, v%d, s[22:23]" % (dummy, t0), "pf")
            for ln in ["s_lshl_b32 s21, s%d, 14" % sSLOT, "s_add_u32 s21, s21, 8192", "v_lshlrev_b32 v%d, 7, v%d" % (t0, L), "v_add_u32 v%d, s21, v%d" % (t0, t0)]: a(ln)
            a.vmem("global_load_dword v%d, v%d, s[12:13]" % (dummy, t0), "pf")
        st("epiA")
        KL, VL = self.KL, self.VL
        pol2, polad2 = tmp + 8, tmp + 9
        QA, QB_ = self.QA, self.QB
        def hookB(bar):
            if bar == 12:
                a("s_lshl_b32 s20, s%d, 8" % sRB); a("s_lshl_b32 s21, s%d, 2" % sCG); a("s_add_u32 s20, s20, s21"); a("s_add_u32 s20, s20, %s" % hex(F2))
                self.flag_store(20, t0, t1)
            if bar == 14:
                a("s_lshl_b32 s20, s%d, 1" % sQB); a("s_sub_u32 s20, s20, 2")
                a("v_lshrrev_b32 v%d, 4, v%d" % (t0, L)); a("v_add_u32 v%d, s20, v%d" % (t0, t0)); a("v_max_i32 v%d, 0, v%d" % (t0, t0))
                a("v_lshlrev_b32 v%d, 8, v%d" % (t0, t0)); a("v_and_b32 v%d, 15, v%d" % (t1, L)); a("v_lshlrev_b32 v%d, 2, v%d" % (t1, t1))
                a("v_add_u32 v%d, v%d, v%d" % (polad2, t0, t1))
                a("s_mov_b32 s31, %s" % hex(F2))
                a.vmem("buffer_load_dword v%d, v%d, s[%d:%d], s31 offen %s" % (pol2, polad2, sWS, sWS + 3, SC1), "f2")
            if bar == 15:
                a.vm_wait("f2")
                self.check_flags(pol2, polad2, 31)
                st("f2ok") if gen_common.STAMP_SET else None
                a("s_lshl_b32 s20, s%d, 16" % sHEAD)
                a("s_lshl_b32 s21, s%d, 3" % sQB); a("s_lshl_b32 s22, s%d, 2" % sW); a("s_add_u32 s21, s21, s22"); a("s_sub_u32 s21, s21, 8")
                a("s_lshl_b32 s21, s21, 10"); a("s_add_u32 s21, s21, s20")
                a("s_add_u32 s23, s21, %s" % hex(KF)); a("s_add_u32 s24, s21, %s" % hex(VF))
                sk = a.newlabel("skipdma")
                a("s_cmp_eq_u32 s%d, 0" % sQB); a("s_cselect_b32 s25, 1, 0"); a("s_cmp_lt_u32 s%d, 2" % sW); a("s_cselect_b32 s25, s25, 0")
                a("s_cmp_lg_u32 s25, 0"); a("s_cbranch_scc1 %s" % sk)
                a("s_lshl_b32 s22, s%d, 12" % sW); a("s_add_u32 m0, s22, %d" % KL); a("s_nop 0")
                for j in range(4): a("buffer_load_dwordx4 v%d, s[%d:%d], s23 offen offset:%d %s lds" % (voffQK, sWS, sWS + 3, 1024 * j, SC1))
                a("s_add_u32 m0, s22, %d" % VL); a("s_nop 0")
                for j in range(4): a("buffer_load_dwordx4 v%d, s[%d:%d], s24 offen offset:%d %s lds" % (voffQK, sWS, sWS + 3, 1024 * j, SC1))
                a.label(sk)
                a("s_lshl_b32 s21, s%d, 3" % sQB); a("s_lshl_b32 s22, s%d, 1" % sW); a("s_add_u32 s21, s21, s22")
                a("s_lshl_b32 s21, s21, 10"); a("s_add_u32 s21, s21, s20"); a("s_add_u32 s21, s21, %s" % hex(QF))
                a.vmem("buffer_load_dwordx4 a[%d:%d], v%d, s[%d:%d], s21 offen %s" % (QA, QA + 3, voffQK, sWS, sWS + 3, SC1), "q")
                a.vmem("buffer_load_dwordx4 a[%d:%d], v%d, s[%d:%d], s21 offen offset:1024 %s" % (QB_, QB_ + 3, voffQK, sWS, sWS + 3, SC1), "q")
        run_pass(True, hookB)
        assert not pend
        st("passB")
        a("s_lshl_b32 s20, s%d, 7" % sFB); a("v_add_u32 v%d, s20, v%d" % (t0, csw))
        a.lds("ds_write_b128 v%d, v[%d:%d] offset:512" % (t0, CSA, CSA + 3), "csw")
        a.lg_wait("csw"); a("s_barrier")
        for j in range(4): cs_reads(sFB + j, 512, accA + 16 * j)
        for j in range(4): epi_frag(accB + 16 * j, sFB + j, accA + 16 * j, False)
        st("epiB")

    def unit_alloc(self):
        return self.free_units.pop(0)

    def phase_cde(self):
        a, st = self.a, self.st
        KL, VL, ONES = self.KL, self.VL, self.ONES
        QA, QB_ = self.QA, self.QB
        V = Alloc(2, 256)
        sTINV, sT0 = 46, 47
        sRB64, sCT, sWM, sWN = 48, 49, 50, 51
        sW2, sWO, sXR = 32, 36, 40
        sM0W, sOW, sM0A, sOH, sOO, sXO, sF4 = 52, 53, 44, 45, 60, 61, 31
        sOUT = 56
        voff = V("voff"); voffW = V("voffW", 2); aad = V("aad", 3); wad = V("wad", 3); pol = V("pol"); polad = V("polad"); dummy = V("dummy")
        xr = V("xr", 8, 4); rs = V("rs"); voffO = V("voffO")
        markD = V.p
        kad = V("kad"); vad = V("vad"); vstep = V("vstep")
        t0 = V("t", 8, 4); t1, t2, t3, t4, t5 = [t0 + i for i in range(1, 6)]
        SA = V("SA", 32, 4); SB = V("SB", 32, 4)
        MO = V("maskOld", 16, 4); MD = V("maskDiag", 16, 4)
        AO = V("andOld", 8, 4); AD = V("andDiag", 8, 4)
        PA = V("PA", 8, 4); PB = V("PB", 8, 4)
        mA = V("mA"); mB = V("mB")
        KB, VB, OA, OB = 8, 16, 32, 48
        a("s_lshl_b32 s20, s%d, 2" % sG); a("s_lshr_b32 s21, s%d, 3" % sSLOT); a("s_add_u32 s%d, s20, s21" % sRB64)
        a("s_and_b32 s%d, s%d, 7" % (sCT, sSLOT))
        a("s_and_b32 s%d, s%d, 1" % (sWM, sW)); a("s_lshr_b32 s%d, s%d, 1" % (sWN, sW))
        a("v_lshlrev_b32 v%d, 4, v%d" % (voff, L))
        a("s_lshl_b32 s20, s%d, 7" % sCT)
        for (sd, lo, rows) in ((sW2, sW2P, 1792), (sWO, sWOP, 512)):
            a("s_add_u32 s%d, s%d, s20" % (sd, lo)); a("s_addc_u32 s%d, s%d, 0" % (sd + 1, lo + 1))
            a("s_sub_u32 s%d, %d, s20" % (sd + 2, rows * 1024)); a("s_mov_b32 s%d, 0x20000" % (sd + 3))
        a("v_lshrrev_b32 v%d, 3, v%d" % (t0, L)); a("v_lshlrev_b32 v%d, 10, v%d" % (t0, t0))
        a("v_bfe_u32 v%d, v%d, 2, 1" % (t1, L)); a("v_bfe_u32 v%d, v%d, 4, 1" % (t2, L))
        a("v_xor_b32 v%d, v%d, v%d" % (t1, t1, t2)); a("v_lshlrev_b32 v%d, 6, v%d" % (t1, t1)); a("v_add_u32 v%d, v%d, v%d" % (t0, t0, t1))
        a("v_and_b32 v%d, 3, v%d" % (t1, L)); a("v_lshlrev_b32 v%d, 4, v%d" % (t1, t1)); a("v_add_u32 v%d, v%d, v%d" % (voffW, t0, t1))
        a("v_add_u32 v%d, 7168, v%d" % (voffW + 1, voffW))
        a("s_lshl_b32 s%d, s%d, 11" % (sM0W, sW)); a("s_lshl_b32 s%d, s%d, 14" % (sOW, sW))
        NG = 36
        self.free_units = list(range(0, 14)) + [19]
        unitW, unitA = {}, {}
        def w_dma(g):
            u = self.unit_alloc(); unitW[g] = u
            ffn = g < 28; gg = g if ffn else g - 28; sd = sW2 if ffn else sWO
            for t in range(2):
                a("s_add_u32 s101, s%d, %d" % (sOW, gg * 65536)); a("s_add_u32 m0, s%d, %d" % (sM0W, u * 8192))
                a.vmem("buffer_load_dwordx4 v%d, s[%d:%d], s101 offen offset:%d lds" % (voffW + t, sd, sd + 3, 1024 * t), ("w", g))
        def a_dma(g):
            u = self.unit_alloc(); unitA[g] = u
            ffn = g < 28; gg = g if ffn else g - 28
            a("s_add_u32 s100, s%d, %d" % (sOH if ffn else sOO, gg * 4096)); a("s_add_u32 m0, s%d, %d" % (sM0A, u * 8192))
            for j in range(2):
                a.vmem("buffer_load_dwordx4 v%d, s[%d:%d], s100 offen offset:%d %s lds" % (voff, sWS, sWS + 3, 1024 * j, SC1), ("a", g))
        NWPRE, NAPRE = 11, 4
        nw = [0]
        def w_pre(n):
            for _ in range(n):
                if nw[0] < NWPRE: w_dma(nw[0]); nw[0] += 1
        a("s_lshl_b32 s21, s%d, 3" % sQB); a("s_lshl_b32 s22, s%d, 1" % sW); a("s_add_u32 s%d, s21, s22" % sT0)
        a("s_lshl_b32 s22, s%d, 1" % sW); a("s_sub_u32 s22, 8, s22"); a("s_cmp_eq_u32 s%d, 0" % sQB); a("s_cselect_b32 s%d, s22, 0" % sTINV)
        for q in range(4): a("v_mov_b32 v%d, 0x3f803f80" % (SA + q))
        a("v_add_u32 v%d, %d, v%d" % (t1, ONES, voff)); a("ds_write_b128 v%d, v[%d:%d]" % (t1, SA, SA + 3))
        a("v_and_b32 v%d, 31, v%d" % (t1, L)); a("v_lshrrev_b32 v%d, 5, v%d" % (t2, L)); a("v_lshlrev_b32 v%d, 2, v%d" % (t2, t2))
        a("v_sub_u32 v%d, v%d, v%d" % (t1, t1, t2))
        a("v_mov_b32 v%d, %s" % (t3, hex(f32bits(NEG)))); a("v_mov_b32 v%d, 0" % t4)
        a("v_mov_b32 v%d, 0xffff" % t5); a("v_mov_b32 v%d, 0xffff0000" % (t0 + 6))
        for grp in range(2):
            for k_ in range(8):
                r = 8 * grp + k_; i0 = 8 * (r >> 2) + (r & 3)
                a("v_cmp_ge_i32 s[%d:%d], v%d, %d" % (54 + 2 * k_, 55 + 2 * k_, t1, i0))
            for k_ in range(8):
                r = 8 * grp + k_; m = "s[%d:%d]" % (54 + 2 * k_, 55 + 2 * k_)
                a("v_cndmask_b32 v%d, v%d, v%d, %s" % (MD + r, t3, t4, m)); a("v_cndmask_b32 v%d, v%d, v%d, %s" % (MO + r, t4, t3, m))
                a("v_cndmask_b32 v%d, v%d, v%d, %s" % (SB + (r & 1), t4, t5 if (r & 1) == 0 else t0 + 6, m))
                if r & 1:
                    a("v_or_b32 v%d, v%d, v%d" % (AD + r // 2, SB, SB + 1)); a("v_not_b32 v%d, v%d" % (AO + r // 2, AD + r // 2))
        a("s_lshl_b32 s22, s%d, 11" % sW); a("s_add_u32 s23, s22, %d" % KL); a("v_add_u32 v%d, s23, v%d" % (kad, voff))
        a("v_bfe_u32 v%d, v%d, 2, 2" % (t1, L)); a("v_lshrrev_b32 v%d, 5, v%d" % (t2, L))
        a("v_lshlrev_b32 v%d, 2, v%d" % (t3, t2)); a("v_add_u32 v%d, v%d, v%d" % (t3, t3, t1)); a("v_lshlrev_b32 v%d, 5, v%d" % (t3, t3))
        a("v_and_b32 v%d, 1, v%d" % (t4, L)); a("v_lshlrev_b32 v%d, 4, v%d" % (t4, t4)); a("v_add_u32 v%d, v%d, v%d" % (t3, t3, t4))
        a("v_bfe_u32 v%d, v%d, 1, 1" % (t4, L)); a("v_lshlrev_b32 v%d, 3, v%d" % (t4, t4)); a("v_add_u32 v%d, v%d, v%d" % (t3, t3, t4))
        a("s_add_u32 s22, s22, %d" % VL); a("v_add_u32 v%d, s22, v%d" % (t3, t3))
        a("v_lshlrev_b32 v%d, 7, v%d" % (t4, t2)); a("v_sub_u32 v%d, %d, v%d" % (t4, ONES + 128, t4))
        a("v_bfe_u32 v%d, v%d, 4, 1" % (t5, L)); a("v_cmp_eq_u32 s[26:27], 1, v%d" % t5)
        a("v_mov_b32 v%d, 1024" % t5); a("v_mov_b32 v%d, 0" % t2)
        a("v_cndmask_b32 v%d, v%d, v%d, s[26:27]" % (vad, t3, t4)); a("v_cndmask_b32 v%d, v%d, v%d, s[26:27]" % (vstep, t5, t2))
        a("v_mul_u32_u24 v%d, s%d, v%d" % (t4, sTINV, vstep)); a("v_add_u32 v%d, v%d, v%d" % (vad, vad, t4))
        a("v_mov_b32 v%d, %s" % (mA, hex(f32bits(NEG)))); a("v_mov_b32 v%d, %s" % (mB, hex(f32bits(NEG))))
        lab = a.newlabel("kvl"); lab2 = a.newlabel("kvd")
        a("s_cmp_lg_u32 s%d, 0" % sLIGHT); a("s_cbranch_scc1 %s" % lab)
        a("s_waitcnt vmcnt(8)"); a("s_branch %s ; noskip" % lab2)
        a.label(lab); a("s_waitcnt vmcnt(4)")
        a.label(lab2)
        a("s_waitcnt lgkmcnt(0)"); a.lg = []
        a.vm = ["hst"]
        a("s_barrier")
        st("kv")
        def kread(t): return "ds_read_b128 a[%d:%d], v%d offset:%d" % (KB + 4 * (t & 1), KB + 4 * (t & 1) + 3, kad, 1024 * t)
        def smf(dst, t, q, c): return "v_mfma_f32_32x32x16_bf16 v[%d:%d], a[%d:%d], a[%d:%d], %s" % (dst, dst + 15, KB + 4 * (t & 1), KB + 4 * (t & 1) + 3, q, q + 3, c)
        actA = lambda t: 0 <= t <= 8
        actB = lambda t: 1 <= t <= 9
        def jump_table(prefix):
            for tv in (2, 4, 6, 8):
                a("s_cmp_eq_u32 s%d, %d" % (sTINV, tv)); a("s_cbranch_scc1 %s_%d ; noskip" % (prefix, tv))
        def entry_read():
            a("s_lshl_b32 s22, s%d, 10" % sTINV); a("v_add_u32 v%d, s22, v%d" % (t0, kad)); a("ds_read_b128 a[%d:%d], v%d" % (KB, KB + 3, t0))
        if OPT["wpf2"]:
            for k_ in range(2):
                for ln in ["s_add_u32 s20, s%d, %d" % (sW, 4 * k_), "s_lshl_b32 s21, s20, 13", "s_mul_i32 s22, s%d, 57344" % sSLOT, "s_add_u32 s21, s21, s22",
                           "s_lshl_b32 s22, s%d, 14" % sSLOT, "s_cmp_eq_u32 s20, 7", "s_cselect_b32 s21, s22, s21",
                           "s_cselect_b32 s22, s%d, s%d" % (sWOP, sW2P), "s_cselect_b32 s23, s%d, s%d" % (sWOP + 1, sW2P + 1),
                           "v_lshlrev_b32 v%d, 7, v%d" % (t0, L), "v_add_u32 v%d, s21, v%d" % (t0, t0)]: a(ln)
                a.vmem("global_load_dword v%d, v%d, s[22:23]" % (dummy, t0), "pf")
            lab = a.newlabel("pf3"); a("s_cmp_lg_u32 s%d, 0" % sW); a("s_cbranch_scc1 %s" % lab)
            for ln in ["s_lshl_b32 s21, s%d, 14" % sSLOT, "s_add_u32 s21, s21, 8192", "v_lshlrev_b32 v%d, 7, v%d" % (t0, L), "v_add_u32 v%d, s21, v%d" % (t0, t0)]: a(ln)
            a("global_load_dword v%d, v%d, s[12:13]" % (dummy, t0))
            a.label(lab)
        w_pre(3)
        entry_read(); jump_table("at_p1")
        for t in range(11):
            if t in (2, 4, 6, 8): a.label("at_p1_%d" % t)
            if t <= 9:
                a("s_waitcnt lgkmcnt(0)")
                if actA(t): a(smf(SA + 16 * (t & 1), t, QA, "v[%d:%d]" % (MO, MO + 15) if t == 0 else ("v[%d:%d]" % (MD, MD + 15) if t == 8 else "0")))
                if actB(t): a(smf(SB + 16 * (t & 1), t, QB_, "v[%d:%d]" % (MO, MO + 15) if t == 1 else ("v[%d:%d]" % (MD, MD + 15) if t == 9 else "0")))
                if t + 1 <= 9: a(kread(t + 1))
            p = t - 1
            if p >= 0:
                lab = None
                if t in (2, 4, 6, 8):
                    lab = a.newlabel("s1"); a("s_cmp_eq_u32 s%d, %d" % (sTINV, t)); a("s_cbranch_scc1 %s" % lab)
                for (act, Sx, m) in ((actA, SA, mA), (actB, SB, mB)):
                    if act(p):
                        b = Sx + 16 * (p & 1)
                        for q in range(8): a("v_max3_f32 v%d, v%d, v%d, v%d" % (m, b + 2 * q, b + 2 * q + 1, m))
                if lab: a.label(lab)
        st("p1")
        a.vm_wait("hst")
        self.flag_store(sF3, t0, t1, cond_wave0=False)
        w_pre(4)
        NMA, NMB = MO, MD
        for m in (mA, mB):
            a("v_mov_b32 v%d, v%d" % (t0, m)); a("v_permlane32_swap_b32 v%d, v%d" % (m, t0)); a("v_max_f32 v%d, v%d, v%d" % (m, m, t0)); a("v_sub_f32 v%d, 0, v%d" % (m, m))
        for r in range(16): a("v_mov_b32 v%d, v%d" % (NMA + r, mA)); a("v_mov_b32 v%d, v%d" % (NMB + r, mB))
        for r in range(16): a("v_accvgpr_write_b32 a%d, 0" % (OA + r)); a("v_accvgpr_write_b32 a%d, 0" % (OB + r))
        a("s_lshl_b32 s20, s%d, 2" % sWM); a("s_lshl_b32 s21, s%d, 1" % sWN); a("s_add_u32 s20, s20, s21"); a("s_lshl_b32 s%d, s20, 10" % sM0A)
        a("s_lshl_b32 s20, s%d, 1" % sRB64); a("s_add_u32 s20, s20, s%d" % sWM)
        a("s_mul_i32 s22, s20, 112"); a("s_add_u32 s22, s22, s21"); a("s_lshl_b32 s22, s22, 10"); a("s_add_u32 s%d, s22, %s" % (sOH, hex(HF)))
        a("s_lshl_b32 s22, s20, 5"); a("s_add_u32 s22, s22, s21"); a("s_lshl_b32 s22, s22, 10"); a("s_add_u32 s%d, s22, %s" % (sOO, hex(OF)))
        a("s_lshl_b32 s22, s20, 15"); a("s_lshl_b32 s23, s%d, 7" % sCT); a("s_add_u32 s22, s22, s23"); a("s_lshl_b32 s23, s%d, 6" % sWN); a("s_add_u32 s%d, s22, s23" % sXO)
        a("s_lshr_b32 s20, s%d, 1" % sRB64); a("s_lshl_b32 s20, s20, 8"); a("s_and_b32 s21, s%d, 1" % sRB64); a("s_lshl_b32 s21, s21, 3"); a("s_add_u32 s20, s20, s21")
        a("s_add_u32 s31, s20, %s" % hex(F3))
        a("v_bfe_u32 v%d, v%d, 1, 4" % (t0, L)); a("v_lshlrev_b32 v%d, 4, v%d" % (t0, t0)); a("v_and_b32 v%d, 1, v%d" % (t1, L)); a("v_lshlrev_b32 v%d, 2, v%d" % (t1, t1))
        a("v_add_u32 v%d, v%d, v%d" % (polad, t0, t1))
        def vreads(t):
            vb = VB + 8 * (t & 1); R = []
            for aa in range(2):
                for u in range(2):
                    R.append("ds_read_b64_tr_b16 a[%d:%d], v%d offset:%d" % (vb + 4 * aa + 2 * u, vb + 4 * aa + 2 * u + 1, vad, 512 * aa + 256 * u))
            return R
        entry_read(); jump_table("at_p2")
        for t in range(11):
            if t in (2, 4, 6, 8): a.label("at_p2_%d" % t)
            if t <= 9:
                a("s_waitcnt lgkmcnt(0)")
                if actA(t): a(smf(SA + 16 * (t & 1), t, QA, "v[%d:%d]" % (NMA, NMA + 15)))
                if actB(t): a(smf(SB + 16 * (t & 1), t, QB_, "v[%d:%d]" % (NMB, NMB + 15)))
                if t + 1 <= 9: a(kread(t + 1))
                for r in vreads(t): a(r)
                a("v_add_u32 v%d, v%d, v%d" % (vad, vad, vstep))
            if t == 8:
                a.vmem("buffer_load_dword v%d, v%d, s[%d:%d], s31 offen %s" % (pol, polad, sWS, sWS + 3, SC1), "f3")
                w_pre(2)
            if t == 9: w_pre(2)
            if t == 10:
                a.vm_wait("f3")
                self.check_flags(pol, polad, 31)
                for g in range(NAPRE): a_dma(g)
                if OPT["htouch"]:
                    a("s_lshl_b32 s20, s%d, 1" % sRB64); a("s_mul_i32 s20, s20, %d" % (112 * 1024)); a("s_add_u32 s20, s20, %s" % hex(HF))
                    a("s_mul_i32 s21, s%d, 28672" % sCT); a("s_add_u32 s20, s20, s21"); a("s_mul_i32 s21, s%d, 7168" % sW); a("s_add_u32 s20, s20, s21")
                    a("v_lshlrev_b32 v%d, 7, v%d" % (t0, L)); a("v_min_u32 v%d, 7040, v%d" % (t0, t0))
                    a.vmem("buffer_load_dword v%d, v%d, s[%d:%d], s20 offen %s" % (dummy, t0, sWS, sWS + 3, SC1), "pf")
            p = t - 1
            if p >= 0:
                lab = None
                if t in (2, 4, 6, 8):
                    lab = a.newlabel("s2"); a("s_cmp_eq_u32 s%d, %d" % (sTINV, t)); a("s_cbranch_scc1 %s" % lab)
                vb = VB + 8 * (p & 1)
                for (act, Sx, Px, Ox, told, tdiag) in ((actA, SA, PA, OA, 0, 8), (actB, SB, PB, OB, 1, 9)):
                    if act(p):
                        b = Sx + 16 * (p & 1)
                        for r in range(16): a("v_exp_f32 v%d, v%d" % (b + r, b + r))
                        for q in range(8): a("v_cvt_pk_bf16_f32 v%d, v%d, v%d" % (Px + q, b + 2 * q, b + 2 * q + 1))
                        if p == told:
                            for q in range(8): a("v_and_b32 v%d, v%d, v%d" % (Px + q, Px + q, AO + q))
                        if p == tdiag:
                            for q in range(8): a("v_and_b32 v%d, v%d, v%d" % (Px + q, Px + q, AD + q))
                        if t > 9: a("s_waitcnt lgkmcnt(0)")
                        for aa in range(2):
                            a("v_mfma_f32_32x32x16_bf16 a[%d:%d], a[%d:%d], v[%d:%d], a[%d:%d]" % (Ox, Ox + 15, vb + 4 * aa, vb + 4 * aa + 3, Px + 4 * aa, Px + 4 * aa + 3, Ox, Ox + 15))
                if lab: a.label(lab)
        assert nw[0] == NWPRE
        st("p2")
        a("s_lshl_b32 s21, s%d, 15" % sT0); a("s_lshl_b32 s22, s%d, 10" % sHEAD); a("s_add_u32 s21, s21, s22")
        a("s_add_u32 s21, s21, %s" % hex(OF)); a("s_add_u32 s22, s21, 32768")
        for (Ox, Px, so) in ((OA, PA, 21), (OB, PB, 22)):
            a("v_accvgpr_read_b32 v%d, a%d" % (t0, Ox + 8)); a("v_rcp_f32 v%d, v%d" % (t0, t0))
            for r in range(8):
                a("v_accvgpr_read_b32 v%d, a%d" % (SA + r, Ox + r)); a("v_mul_f32 v%d, v%d, v%d" % (SA + r, t0, SA + r))
            for q in range(4): a("v_cvt_pk_bf16_f32 v%d, v%d, v%d" % (Px + q, SA + 2 * q, SA + 2 * q + 1))
            a.vmem("buffer_store_dwordx4 v[%d:%d], v%d, s[%d:%d], s%d offen %s" % (Px, Px + 3, voff, sWS, sWS + 3, so, SC1), "ost")
        lab = a.newlabel("noep"); loop = a.newlabel("epl")
        a("s_cmp_lg_u32 s2, 0"); a("s_cbranch_scc1 %s" % lab); a("s_cmp_lg_u32 s%d, 0" % sW); a("s_cbranch_scc1 %s" % lab)
        a("v_lshrrev_b32 v%d, 2, v%d" % (t0, L)); a("v_lshlrev_b32 v%d, 8, v%d" % (t0, t0)); a("v_and_b32 v%d, 3, v%d" % (t1, L)); a("v_lshlrev_b32 v%d, 4, v%d" % (t1, t1))
        a("v_add_u32 v%d, v%d, v%d" % (t0, t0, t1)); a("s_mov_b32 s20, %s" % hex(F2)); a("s_mov_b32 s23, %d" % SPIN)
        a.label(loop)
        a("s_sub_u32 s23, s23, 1"); a("s_cmp_eq_u32 s23, 0"); a("s_cbranch_scc1 %s" % lab)
        a("buffer_load_dwordx4 v[%d:%d], v%d, s[%d:%d], s20 offen %s" % (t0 + 4, t0 + 7, t0, sWS, sWS + 3, SC1))
        a("s_waitcnt vmcnt(0)")
        for q in range(4): a("v_xor_b32 v%d, s%d, v%d" % (t0 + 4 + q, sTAG, t0 + 4 + q))
        a("v_or_b32 v%d, v%d, v%d" % (t0 + 4, t0 + 4, t0 + 5)); a("v_or_b32 v%d, v%d, v%d" % (t0 + 6, t0 + 6, t0 + 7)); a("v_or_b32 v%d, v%d, v%d" % (t0 + 4, t0 + 4, t0 + 6))
        a("v_cmp_ne_u32 vcc, 0, v%d" % (t0 + 4)); a("s_cbranch_vccnz %s ; noskip" % loop)
        a("v_mov_b32 v%d, s%d" % (t0 + 4, sTAG)); a("v_mov_b32 v%d, 0" % t1); a("s_mov_b32 s20, %s" % hex(EPO))
        a("s_mov_b64 exec, 1")
        a("buffer_store_dword v%d, v%d, s[%d:%d], s20 offen %s" % (t0 + 4, t1, sWS, sWS + 3, SC1))
        a("s_mov_b64 exec, -1")
        a.label(lab)

        V = Alloc(markD, 256)
        t0 = V("t", 20, 4); t1, t2, t3, t4, t5 = [t0 + i for i in range(1, 6)]
        PF = 4
        AB = V("AB", 4 * (PF + 1), 4); WBf = V("WB", 4 * (PF + 1), 4)
        accF = V("accF", 16, 4); accS = V("accS", 16, 4)
        srd(a, sXR, "s%d" % sXP, "s%d" % (sXP + 1), 2048 * 1024)
        srd(a, sOUT, "s%d" % sOUTP, "s%d" % (sOUTP + 1), 2048 * 1024)
        a("v_and_b32 v%d, 31, v%d" % (t0, L)); a("v_lshlrev_b32 v%d, 10, v%d" % (t1, t0))
        a("v_lshrrev_b32 v%d, 5, v%d" % (t2, L)); a("v_lshlrev_b32 v%d, 4, v%d" % (t2, t2)); a("v_add_u32 v%d, v%d, v%d" % (voffO, t1, t2))
        a("s_lshl_b32 s22, s%d, 12" % sWM); a("v_add_u32 v%d, s22, v%d" % (aad, voff))
        a("v_bfe_u32 v%d, v%d, 2, 2" % (t2, L)); a("v_lshrrev_b32 v%d, 5, v%d" % (t1, L))
        a("v_lshlrev_b32 v%d, 2, v%d" % (t1, t1)); a("v_add_u32 v%d, v%d, v%d" % (t1, t1, t2)); a("v_lshlrev_b32 v%d, 7, v%d" % (t1, t1))
        a("v_lshrrev_b32 v%d, 1, v%d" % (t2, t2)); a("v_xor_b32 v%d, s%d, v%d" % (t2, sWN, t2)); a("v_lshlrev_b32 v%d, 6, v%d" % (t2, t2)); a("v_add_u32 v%d, v%d, v%d" % (t1, t1, t2))
        a("v_bfe_u32 v%d, v%d, 4, 1" % (t2, L)); a("v_lshlrev_b32 v%d, 5, v%d" % (t2, t2)); a("v_add_u32 v%d, v%d, v%d" % (t1, t1, t2))
        a("v_and_b32 v%d, 3, v%d" % (t2, L)); a("v_lshlrev_b32 v%d, 3, v%d" % (t2, t2)); a("v_add_u32 v%d, v%d, v%d" % (wad, t1, t2))
        for rg in (1, 2):
            a("v_add_u32 v%d, %d, v%d" % (aad + rg, 65536 * rg, aad)); a("v_add_u32 v%d, %d, v%d" % (wad + rg, 65536 * rg, wad))
        def reads3(s_):
            g = s_ >> 2; sp = s_ & 3; b = s_ % (PF + 1)
            ua, uw = unitA[g], unitW[g]
            return ["ds_read_b128 v[%d:%d], v%d offset:%d" % (AB + 4 * b, AB + 4 * b + 3, aad + ua // 8, (ua % 8) * 8192 + sp * 1024),
                    "ds_read_b64_tr_b16 v[%d:%d], v%d offset:%d" % (WBf + 4 * b, WBf + 4 * b + 1, wad + uw // 8, (uw % 8) * 8192 + sp * 2048),
                    "ds_read_b64_tr_b16 v[%d:%d], v%d offset:%d" % (WBf + 4 * b + 2, WBf + 4 * b + 3, wad + uw // 8, (uw % 8) * 8192 + sp * 2048 + 1024)]
        a.vm_wait(("a", 0)); a("s_barrier")
        st("d0")
        self.free_units += [14, 15, 16, 17, 18]
        next_a, next_w = NAPRE, NWPRE
        NST = NG * 4
        s4_done = [False]; f4_polled = [False]
        def issue_more(g, budget):
            nonlocal next_a, next_w
            while budget > 0 and self.free_units and (next_a < NG or next_w < NG):
                if next_a < NG and (next_a <= next_w or next_w >= NG):
                    if next_a == 28 and not s4_done[0]:
                        if not f4_polled[0]: return
                        a.vm_wait("f4"); self.check_flags(pol, polad, sF4); s4_done[0] = True
                    a_dma(next_a); next_a += 1
                else:
                    w_dma(next_w); next_w += 1
                budget -= 1
        issue_more(0, 3)
        a.vmem("buffer_load_dwordx4 v[%d:%d], v%d, s[%d:%d], s%d offen" % (xr, xr + 3, voffO, sXR, sXR + 3, sXO), "x")
        a.vmem("buffer_load_dwordx4 v[%d:%d], v%d, s[%d:%d], s%d offen offset:32" % (xr + 4, xr + 7, voffO, sXR, sXR + 3, sXO), "x")
        a("s_lshl_b32 s20, s%d, 1" % sRB64); a("s_add_u32 s20, s20, s%d" % sWM); a("s_lshl_b32 s20, s20, 7"); a("s_add_u32 s20, s20, %s" % hex(RSTD))
        a("v_and_b32 v%d, 31, v%d" % (t0, L)); a("v_lshlrev_b32 v%d, 2, v%d" % (t0, t0))
        a.vmem("buffer_load_dword v%d, v%d, s[%d:%d], s20 offen %s" % (rs, t0, sWS, sWS + 3, SC1), "x")
        for st0 in range(PF):
            for r in reads3(st0): a.lds(r, ("rd", st0))
        for s_ in range(NST):
            nxt = s_ + PF
            if nxt < NST and (nxt & 3) == 0:
                g = nxt >> 2
                a.vm_wait(("a", g)); a.vm_wait(("w", g))
                if g == 4: a.vm_wait("ost")
                a("s_barrier")
                st("g%d" % g) if gen_common.STAMP_SET else None
                if g == 4:
                    a("s_lshl_b32 s20, s%d, 8" % sQB); a("s_lshl_b32 s21, s%d, 2" % sHEAD); a("s_add_u32 s20, s20, s21"); a("s_add_u32 s20, s20, %s" % hex(F4))
                    self.flag_store(20, t0, t1)
                if g == 14:
                    a("s_lshr_b32 s20, s%d, 2" % sRB64); a("s_lshl_b32 s20, s20, 8"); a("s_add_u32 s%d, s20, %s" % (sF4, hex(F4)))
                    a("v_and_b32 v%d, 31, v%d" % (polad, L)); a("v_lshlrev_b32 v%d, 2, v%d" % (polad, polad))
                    a.vmem("buffer_load_dword v%d, v%d, s[%d:%d], s%d offen %s" % (pol, polad, sWS, sWS + 3, sF4, SC1), "f4")
                    f4_polled[0] = True
                if g == 28: st("e0")
                if g >= 2:
                    self.free_units += [unitA[g - 2], unitW[g - 2]]
                issue_more(g, 3)
            if nxt < NST:
                for r in reads3(nxt): a.lds(r, ("rd", nxt))
            a.lg_wait(("rd", s_))
            acc = accF if s_ < 112 else accS; first = s_ in (0, 112); b = s_ % (PF + 1)
            a("v_mfma_f32_32x32x16_bf16 v[%d:%d], v[%d:%d], v[%d:%d], %s" % (acc, acc + 15, WBf + 4 * b, WBf + 4 * b + 3, AB + 4 * b, AB + 4 * b + 3, "0" if first else "v[%d:%d]" % (acc, acc + 15)))
        assert next_a == NG and next_w == NG, (next_a, next_w)
        st("main")
        a.vm_wait_all()
        for r in range(16): a("v_mul_f32 v%d, v%d, v%d" % (accF + r, rs, accF + r))
        for r0 in range(0, 16, 4):
            for q in range(4): a("v_mul_f32 v%d, %s, v%d" % (t0 + q, hex(f32bits(-1.4426950408889634)), accF + r0 + q))
            for q in range(4): a("v_exp_f32 v%d, v%d" % (t0 + q, t0 + q))
            for q in range(4): a("v_add_f32 v%d, 1.0, v%d" % (t0 + q, t0 + q))
            for q in range(4): a("v_rcp_f32 v%d, v%d" % (t0 + q, t0 + q))
            for q in range(4): a("v_mul_f32 v%d, v%d, v%d" % (accF + r0 + q, t0 + q, accF + r0 + q))
            for q in range(4): a("v_mul_f32 v%d, v%d, v%d" % (accS + r0 + q, accF + r0 + q, accS + r0 + q))
        for qp in range(2):
            for e in range(4): a("v_permlane32_swap_b32 v%d, v%d" % (accS + 8 * qp + e, accS + 8 * qp + 4 + e))
        for qp in range(2):
            for d in range(4):
                xv = xr + 4 * qp + d; r0 = accS + 8 * qp + 2 * d
                a("v_lshlrev_b32 v%d, 16, v%d" % (t0, xv)); a("v_and_b32 v%d, 0xffff0000, v%d" % (t1, xv))
                a("v_add_f32 v%d, v%d, v%d" % (t0, t0, r0)); a("v_add_f32 v%d, v%d, v%d" % (t1, t1, r0 + 1))
                a("v_cvt_pk_bf16_f32 v%d, v%d, v%d" % (xv, t0, t1))
            a("buffer_store_dwordx4 v[%d:%d], v%d, s[%d:%d], s%d offen offset:%d" % (xr + 4 * qp, xr + 4 * qp + 3, voffO, sOUT, sOUT + 3, sXO, 32 * qp))
        if gen_common.STAMP: a("s_waitcnt vmcnt(0)")
        st("end")
        st.flush(sWS, sWS + 1, sW, t0)

    def build(self):
        self.KL, self.VL, self.ONES = 114688, 131072, 147456
        self.QA, self.QB = 128, 132
        self.phase_ab()
        self.phase_cde()
        a = self.a
        a.label("%s_done" % KNAME)
        a("s_endpgm")
        a.label("Lend")
        a.L = fix_hazards(a.L, True)
        hdr = """; Fused LN + QKV/FFN1 GEMM + sliding-window attention + FFN2/Wo GEMM kernel (generated by my own script)
; @launch grid=(256,1,1) block=(256,1,1) lds=163840
.amdgcn_target "amdgcn-amd-amdhsa--gfx950"
.text
"""
        return hdr + kernel_header(KNAME) + a.text() + kernel_desc(KNAME, 392, 256)
if __name__ == "__main__":
    out = sys.argv[1]
    if "cyc" in sys.argv: gen_common.STAMP_OP = "s_memtime"
    for o in sys.argv[2:]:
        if o.startswith("set:"):
            gen_common.STAMP_SET = o[4:].split(",")
        elif "=" in o:
            k_, v_ = o.split("="); OPT[k_] = int(v_)
    k = K("stamp" in sys.argv)
    s = k.build()
    s = s.replace(".amdgcn_target", "; STAMPS " + " ".join(k.st.names) + "\n.amdgcn_target", 1) if k.st.names else s
    open(out, "w").write(s)
    print("wrote", out, "stamps:", " ".join(k.st.names))
```

```python
import sys
sys.path.insert(0, 'dev')
import gen_common
from gen_common import *
NAME = "recurrent_scan__sliding_block__dense_activation_relu__prompt"
KNAME = NAME + "_kernel"
NEG = -1.0e30
FL = 15 * (1 << 20) + (64 << 10)
F2 = FL
F3 = FL + 8192
F4 = FL + 16384
EPO = FL + 32768 + 4096
SC1 = "sc1"
SPIN = 20000
OPT = dict(rot=True, now=False, noa=False, wpf=False, lpw=28, wpos=(8, 9, 10, 11), f2bar=11, tf3=12, aps=4, apd=1, s4step=40, htouch=True, wpf2=False, touch0=False, sch=(8, 0, 4), na0=24, tpoll=5, tchk=7, ttouch=0, la=44, otouch=False, outst='', lateb=False, ctx=0, rbx=0, t3w2=13, t3wo=13, wr=())

sLIGHT = 3; sWS = 4; sXP, sW2P, sWOP, sOUTP = 8, 10, 12, 14
sW, sTAG, sG, sSLOT = 16, 17, 18, 19
sHEAD, sQB, sF3 = 28, 29, 30
L = 1

class K:
    def __init__(self, stamp):
        gen_common.STAMP = stamp
        self.a = Asm()
        self.st = gen_common.Stamps(self.a, 0)

    def flag_store(self, soff, t0, t1, cond_wave0=True):
        a = self.a
        lab = None
        if cond_wave0:
            lab = a.newlabel("nofl"); a("s_cmp_lg_u32 s%d, 0" % sW); a("s_cbranch_scc1 %s" % lab)
        a("v_mov_b32 v%d, s%d" % (t0, sTAG)); a("v_mov_b32 v%d, 0" % t1)
        a("s_mov_b64 exec, 1")
        a("buffer_store_dword v%d, v%d, s[%d:%d], s%d offen %s" % (t0, t1, sWS, sWS + 3, soff, SC1))
        a("s_mov_b64 exec, -1")
        if lab: a.label(lab)
    def check_flags(self, pol, polad, soff):
        a = self.a
        ok = a.newlabel("fok"); loop = a.newlabel("fl")
        a("s_mov_b32 s21, %d" % SPIN)
        a.label(loop)
        a("v_cmp_ne_u32 vcc, s%d, v%d" % (sTAG, pol))
        a("s_cbranch_vccz %s" % ok)
        a("s_sub_u32 s21, s21, 1"); a("s_cmp_eq_u32 s21, 0"); a("s_cbranch_scc1 %s" % ok)
        a("s_sleep 1")
        a("buffer_load_dword v%d, v%d, s[%d:%d], s%d offen %s" % (pol, polad, sWS, sWS + 3, soff, SC1))
        a("s_waitcnt vmcnt(0)")
        a("s_branch %s ; noskip" % loop)
        a.label(ok)

    def touch_slow(self, base_s, nrows_per_wave, total_rows, t0, t1, dummy, srd0=64):
        a = self.a
        srd(a, srd0, "s%d" % base_s, "s%d" % (base_s + 1), total_rows * 1024)
        a("s_sub_u32 s20, 384, s%d" % base_s); a("s_and_b32 s20, s20, 0x380")
        a("s_lshl_b32 s21, s%d, 2" % sSLOT); a("s_add_u32 s21, s21, s%d" % sW); a("s_mul_i32 s21, s21, %d" % (nrows_per_wave * 1024)); a("s_add_u32 s20, s20, s21")
        a("v_lshlrev_b32 v%d, 10, v%d" % (t0, L))
        a("v_mov_b32 v%d, 0x7ff00000" % t1); a("s_mov_b32 s22, %d" % nrows_per_wave); a("v_cmp_gt_u32 s[22:23], s22, v%d" % L)
        a("v_cndmask_b32 v%d, v%d, v%d, s[22:23]" % (t0, t1, t0))
        a.vmem("buffer_load_dword v%d, v%d, s[%d:%d], s20 offen" % (dummy, t0, srd0, srd0 + 3), "pf")
    def phase_ab(self):
        a, st = self.a, self.st
        a("s_cmp_ge_u32 s2, 256"); a("s_cbranch_scc1 %s_done" % KNAME)
        st("start")
        a("s_load_dwordx4 s[20:23], s[0:1], %d" % KA_X)
        a("s_load_dwordx2 s[12:13], s[0:1], %d" % KA_WO)
        a("s_load_dwordx4 s[24:27], s[0:1], %d" % KA_W1)
        a("s_load_dwordx2 s[14:15], s[0:1], %d" % KA_OUT)
        a("s_load_dwordx2 s[4:5], s[0:1], %d" % KA_WS)
        a("v_lshrrev_b32 v2, 6, v0"); a("v_and_b32 v%d, 63, v0" % L)
        a("v_readfirstlane_b32 s%d, v2" % sW)
        a("s_and_b32 s%d, s2, 7" % sG); a("s_lshr_b32 s%d, s2, 3" % sSLOT)
        V = Alloc(2, 256)
        sX, sWA, sWB = 32, 36, 40
        sRB, sCG = 44, 45
        sM0X, sM0A, sOX, sOA, sOB, sTILE, sL0 = 46, 47, 48, 49, 50, 51, 53
        sFA, sFB = 54, 58
        voffX = V("voffX", 4); voffA = V("voffA", 3); voffB = V("voffB", 4)
        xad = V("xad", 12); aad = V("aad", 9); bad = V("bad", 12)
        sel = V("sel", 4, 4); RS = V("RS", 4, 4); CSA = V("CS", 4, 4)
        WB = V("WB", 32, 4)
        accB = V("accB", 64, 4); accA = V("accA", 48, 4); G = V("gram", 16, 4)
        tmp = V("tmp", 16, 4)
        mean2 = V("mean2", 2, 2); sc2 = V("sc2", 2, 2); rstd = V("rstd"); voffQK = V("voffQK"); voffV = V("voffV")
        csw = V("csw"); csr = V("csr"); dummy = V("dummy")
        XA = 0; SLOT = 28672; CS_LDS = 148480
        t0, t1, t2, t3, t4, t5 = [tmp + i for i in range(6)]
        a("s_and_b32 s62, s%d, 1" % sG); a("s_lshl_b32 s62, s62, 3"); a("s_and_b32 s63, s%d, 7" % sSLOT); a("s_xor_b32 s63, s63, %d" % OPT["rbx"]); a("s_add_u32 s%d, s62, s63" % sRB)
        a("s_lshr_b32 s62, s%d, 1" % sG); a("s_lshl_b32 s62, s62, 2"); a("s_lshr_b32 s63, s%d, 3" % sSLOT); a("s_add_u32 s%d, s62, s63" % sCG)
        a("s_lshl_b32 s%d, s%d, 12" % (sM0X, sW))
        a("s_mul_i32 s%d, s%d, 3072" % (sM0A, sW)); a("s_add_u32 s%d, s%d, 16384" % (sM0A, sM0A))
        a("s_lshl_b32 s%d, s%d, 15" % (sOX, sW))
        a("s_mul_i32 s%d, s%d, 49152" % (sOA, sW)); a("s_mul_i32 s%d, s%d, 57344" % (sOB, sW))
        a("s_lshl_b32 s%d, s%d, 2" % (sTILE, sRB)); a("s_add_u32 s%d, s%d, s%d" % (sTILE, sTILE, sW))
        a("v_lshrrev_b32 v%d, 3, v%d" % (t0, L)); a("v_lshlrev_b32 v%d, 10, v%d" % (t0, t0))
        a("v_and_b32 v%d, 7, v%d" % (t1, L)); a("v_bfe_u32 v%d, v%d, 4, 2" % (t2, L)); a("v_xor_b32 v%d, v%d, v%d" % (t1, t1, t2))
        for j in range(4):
            a("v_xor_b32 v%d, %d, v%d" % (t3, 4 * (j & 1), t1)); a("v_lshlrev_b32 v%d, 4, v%d" % (t3, t3))
            a("v_add_u32 v%d, v%d, v%d" % (t3, t3, t0)); a("v_add_u32 v%d, %d, v%d" % (voffX + j, 7168 * j, t3))
        a("s_mov_b32 s62, 43691")
        for t in range(3):
            a("v_add_u32 v%d, %d, v%d" % (t0, 64 * t, L)); a("v_mul_u32_u24 v%d, s62, v%d" % (t1, t0)); a("v_lshrrev_b32 v%d, 19, v%d" % (t1, t1))
            a("v_mul_u32_u24 v%d, 12, v%d" % (t2, t1)); a("v_sub_u32 v%d, v%d, v%d" % (t2, t0, t2)); a("v_lshlrev_b32 v%d, 4, v%d" % (t2, t2))
            a("v_mul_u32_u24 v%d, 0xc00, v%d" % (t1, t1)); a("v_add_u32 v%d, v%d, v%d" % (t1, t1, t2)); a("v_subrev_u32 v%d, %d, v%d" % (voffA + t, 1024 * t, t1))
        a("s_waitcnt lgkmcnt(0)")
        a("s_lshl_b32 s62, s%d, 17" % sRB)
        a("s_add_u32 s%d, s20, s62" % sX); a("s_addc_u32 s%d, s21, 0" % (sX + 1)); a("s_mov_b32 s%d, 0x20000" % (sX + 2)); a("s_mov_b32 s%d, 0x20000" % (sX + 3))
        a("s_mul_i32 s62, s%d, 192" % sCG)
        a("s_add_u32 s%d, s22, s62" % sWA); a("s_addc_u32 s%d, s23, 0" % (sWA + 1)); a("s_sub_u32 s%d, %d, s62" % (sWA + 2, 512 * 3072)); a("s_mov_b32 s%d, 0x20000" % (sWA + 3))

        def pieceB(i, sp):
            if i < 12 or not OPT["lateb"]: return (i % 5) * SLOT + 4096 * sp
            if i == 12: return 45056 + 4096 * sp
            if i == 13: return 61440 + 4096 * sp
            if i == 14: return 77824 + 4096 * sp if sp < 2 else 16384 + 4096 * (sp - 2)
            return 24576 if sp == 0 else 102400 + 4096 * (sp - 1)
        def dma_list(i):
            base = (i % 5) * SLOT; kb = i & 7; out = []
            if i < 8:
                pre = ["s_add_u32 s100, s%d, %d" % (sOX, kb * 128), "s_add_u32 m0, s%d, %d" % (sM0X, base)]
                for j in range(4):
                    out.append((pre if j == 0 else [], "buffer_load_dwordx4 v%d, s[%d:%d], s100 offen offset:%d lds" % (voffX + j, sX, sX + 3, 1024 * j)))
                pre = ["s_add_u32 s101, s%d, %d" % (sOA, kb * 196608), "s_add_u32 m0, s%d, %d" % (sM0A, base)]
                for t in range(3):
                    out.append((pre if t == 0 else [], "buffer_load_dwordx4 v%d, s[%d:%d], s101 offen offset:%d lds" % (voffA + t, sWA, sWA + 3, 1024 * t)))
            else:
                pre = ["s_add_u32 s101, s%d, %d" % (sOB, kb * 229376)]
                if i < 14 or not OPT["lateb"]: pre += ["s_add_u32 m0, s%d, %d" % (sM0X, pieceB(i, 0))]
                elif i == 14: pre += ["s_mov_b32 s100, %d" % (16384 - 8192), "s_cmp_lt_u32 s%d, 2" % sW, "s_cselect_b32 s100, %d, s100" % 77824, "s_add_u32 m0, s%d, s100" % sM0X]
                else: pre += ["s_mov_b32 s100, %d" % (102400 - 4096), "s_cmp_lt_u32 s%d, 1" % sW, "s_cselect_b32 s100, %d, s100" % 24576, "s_add_u32 m0, s%d, s100" % sM0X]
                for t in range(4):
                    out.append((pre if t == 0 else [], "buffer_load_dwordx4 v%d, s[%d:%d], s101 offen offset:%d lds" % (voffB + t, sWB, sWB + 3, 1024 * t)))
            return out
        def emit_dma(item, ent):
            for p in ent[0]: a(p)
            a.vmem(ent[1], ("item", item))
        if OPT["touch0"]:
            cgl, cgq = 62, 63
            a("s_lshr_b32 s62, s%d, 3" % sSLOT)
            a("v_and_b32 v%d, 31, v%d" % (t0, L)); a("s_lshl_b32 s63, s62, 5"); a("v_add_u32 v%d, s63, v%d" % (t0, t0)); a("v_lshlrev_b32 v%d, 10, v%d" % (t0, t0))
            a("v_lshrrev_b32 v%d, 5, v%d" % (t1, L)); a("v_lshlrev_b32 v%d, 7, v%d" % (t1, t1)); a("v_add_u32 v%d, v%d, v%d" % (t0, t0, t1))
            a("s_lshl_b32 s63, s%d, 8" % sW)
            a.vmem("buffer_load_dword v%d, v%d, s[%d:%d], s63 offen" % (dummy, t0, sX, sX + 3), "pf")
            a("s_and_b32 s64, s%d, 1" % sW); a("s_lshl_b32 s64, s64, 6"); a("v_add_u32 v%d, s64, v%d" % (t0, L))
            a("s_lshr_b32 s65, s%d, 1" % sG)
            labB = a.newlabel("tB"); labE = a.newlabel("tE")
            a("s_cmp_ge_u32 s%d, 2" % sW); a("s_cbranch_scc1 %s" % labB)
            a("v_min_u32 v%d, 95, v%d" % (t0, t0))
            a("s_mov_b32 s66, 21846"); a("v_mul_u32_u24 v%d, s66, v%d" % (t1, t0)); a("v_lshrrev_b32 v%d, 18, v%d" % (t1, t1))
            a("v_mul_u32_u24 v%d, 12, v%d" % (t2, t1)); a("v_sub_u32 v%d, v%d, v%d" % (t2, t0, t2))
            a("s_mul_i32 s67, s%d, 12" % sSLOT); a("v_add_u32 v%d, s67, v%d" % (t2, t2))
            a("s_mov_b32 s66, 43691"); a("v_mul_u32_u24 v%d, s66, v%d" % (t3, t2)); a("v_lshrrev_b32 v%d, 18, v%d" % (t3, t3))
            a("v_mul_u32_u24 v%d, 6, v%d" % (t4, t3)); a("v_sub_u32 v%d, v%d, v%d" % (t4, t2, t4)); a("v_lshlrev_b32 v%d, 7, v%d" % (t4, t4))
            a("v_lshlrev_b32 v%d, 6, v%d" % (t1, t1)); a("v_add_u32 v%d, v%d, v%d" % (t1, t1, t3)); a("v_mul_u32_u24 v%d, 0xc00, v%d" % (t1, t1))
            a("v_add_u32 v%d, v%d, v%d" % (t0, t1, t4))
            a("s_mul_i32 s65, s65, 768"); a("s_add_u32 s66, s22, s65"); a("s_addc_u32 s67, s23, 0")
            a("s_branch %s ; noskip" % labE)
            a.label(labB)
            a("v_min_u32 v%d, 111, v%d" % (t0, t0))
            a("s_mov_b32 s66, 37450"); a("v_mul_u32_u24 v%d, s66, v%d" % (t1, t0)); a("v_lshrrev_b32 v%d, 18, v%d" % (t1, t1))
            a("v_mul_u32_u24 v%d, 7, v%d" % (t2, t1)); a("v_sub_u32 v%d, v%d, v%d" % (t2, t0, t2)); a("v_lshlrev_b32 v%d, 7, v%d" % (t2, t2))
            a("s_lshl_b32 s67, s%d, 4" % sSLOT); a("v_add_u32 v%d, s67, v%d" % (t1, t1)); a("v_mul_u32_u24 v%d, 0xe00, v%d" % (t1, t1))
            a("v_add_u32 v%d, v%d, v%d" % (t0, t1, t2))
            a("s_mul_i32 s65, s65, 896"); a("s_add_u32 s66, s24, s65"); a("s_addc_u32 s67, s25, 0")
            a.label(labE)
            a.vmem("global_load_dword v%d, v%d, s[66:67]" % (dummy, t0), "pf")
        startq = []
        for i in range(4): startq += [(i, e) for e in dma_list(i)]
        for _ in range(7):
            it, ent = startq.pop(0); emit_dma(it, ent)
        real = a.L; a.L = []
        a("s_mov_b32 s%d, %s" % (sWS + 2, hex(WS_USED))); a("s_mov_b32 s%d, 0x20000" % (sWS + 3))
        a("s_add_u32 s62, s4, %s" % hex(EPO)); a("s_addc_u32 s63, s5, 0")
        a("s_load_dword s%d, s[62:63], 0" % sTAG)
        a("s_mov_b32 s%d, s20" % sXP); a("s_mov_b32 s%d, s21" % (sXP + 1)); a("s_mov_b32 s%d, s26" % sW2P); a("s_mov_b32 s%d, s27" % (sW2P + 1))
        a("s_lshr_b32 s62, s%d, 2" % sCG); a("s_mul_i32 s62, s62, 7"); a("s_and_b32 s63, s%d, 3" % sCG)
        a("s_cmp_eq_u32 s63, 3"); a("s_cselect_b32 s%d, 1, 0" % sLIGHT)
        a("s_lshl_b32 s63, s63, 1"); a("s_add_u32 s%d, s62, s63" % sL0); a("s_lshl_b32 s62, s%d, 7" % sL0)
        a("s_add_u32 s%d, s24, s62" % sWB); a("s_addc_u32 s%d, s25, 0" % (sWB + 1)); a("s_sub_u32 s%d, %d, s62" % (sWB + 2, 512 * 3584)); a("s_mov_b32 s%d, 0x20000" % (sWB + 3))
        a("s_lshl_b32 s62, s%d, 8" % sRB); a("s_lshl_b32 s63, s%d, 4" % sCG); a("s_add_u32 s62, s62, s63"); a("s_lshl_b32 s63, s%d, 2" % sW); a("s_add_u32 s62, s62, s63")
        a("s_add_u32 s%d, s62, %s" % (sF3, hex(F3)))
        a("s_lshl_b32 s62, s%d, 2" % sG); a("s_and_b32 s63, s%d, 3" % sSLOT); a("s_add_u32 s%d, s62, s63" % sHEAD)
        a("s_lshr_b32 s%d, s%d, 2" % (sQB, sSLOT))
        a("v_lshrrev_b32 v%d, 4, v%d" % (t0, L)); a("v_mul_u32_u24 v%d, 0xe00, v%d" % (t1, t0))
        a("v_bfe_u32 v%d, v%d, 2, 2" % (t2, L)); a("v_xor_b32 v%d, v%d, v%d" % (t2, t2, t0)); a("v_lshlrev_b32 v%d, 6, v%d" % (t2, t2))
        a("v_add_u32 v%d, v%d, v%d" % (t1, t1, t2)); a("v_and_b32 v%d, 3, v%d" % (t2, L)); a("v_lshlrev_b32 v%d, 4, v%d" % (t2, t2))
        a("v_add_u32 v%d, v%d, v%d" % (t1, t1, t2))
        for t in range(4): a("v_add_u32 v%d, %d, v%d" % (voffB + t, 13312 * t, t1))
        a("v_and_b32 v%d, 31, v%d" % (t0, L))
        a("v_lshrrev_b32 v%d, 3, v%d" % (t1, t0)); a("v_lshlrev_b32 v%d, 10, v%d" % (t1, t1))
        a("v_and_b32 v%d, 7, v%d" % (t2, t0)); a("v_lshlrev_b32 v%d, 7, v%d" % (t2, t2)); a("v_add_u32 v%d, v%d, v%d" % (t1, t1, t2))
        a("v_bfe_u32 v%d, v%d, 1, 3" % (t2, t0)); a("v_lshrrev_b32 v%d, 5, v%d" % (t3, L))
        a("v_xor_b32 v%d, v%d, v%d" % (t2, t2, t3)); a("v_lshlrev_b32 v%d, 4, v%d" % (t2, t2)); a("v_add_u32 v%d, v%d, v%d" % (t1, t1, t2))
        a("v_add_u32 v%d, s%d, v%d" % (t1, sM0X, t1))
        for sp in range(4):
            a("v_xor_b32 v%d, %d, v%d" % (xad + sp, 32 * sp, t1))
            for rg in (1, 2): a("v_add_u32 v%d, %d, v%d" % (xad + 4 * rg + sp, 57344 * rg, xad + sp))
        r_, c_, nh_, hi_ = t0, t1, t2, t3
        a("v_bfe_u32 v%d, v%d, 2, 2" % (r_, L)); a("v_and_b32 v%d, 3, v%d" % (c_, L))
        a("v_bfe_u32 v%d, v%d, 4, 1" % (nh_, L)); a("v_lshrrev_b32 v%d, 5, v%d" % (hi_, L))
        a("v_lshlrev_b32 v%d, 3, v%d" % (t4, hi_)); a("v_add_u32 v%d, v%d, v%d" % (t4, t4, r_))
        a("v_lshlrev_b32 v%d, 5, v%d" % (nh_, nh_)); a("v_lshlrev_b32 v%d, 3, v%d" % (c_, c_)); a("v_add_u32 v%d, v%d, v%d" % (c_, c_, nh_))
        a("v_mul_u32_u24 v%d, 192, v%d" % (t5, t4)); a("v_add_u32 v%d, v%d, v%d" % (t5, t5, c_))
        for j in range(3):
            a("s_add_u32 s62, s%d, %d" % (sW, j))
            a("s_cmp_ge_u32 s62, 3"); a("s_cselect_b32 s63, 3, 0"); a("s_sub_u32 s62, s62, s63")
            a("s_cmp_ge_u32 s62, 3"); a("s_cselect_b32 s63, 3, 0"); a("s_sub_u32 s%d, s62, s63" % (sFA + j))
            a("s_lshl_b32 s62, s%d, 6" % (sFA + j)); a("s_add_u32 s62, s62, 16384")
            a("v_add_u32 v%d, s62, v%d" % (aad + j, t5))
            for rg in (1, 2): a("v_add_u32 v%d, %d, v%d" % (aad + 3 * rg + j, 57344 * rg, aad + j))
        a("v_lshlrev_b32 v%d, 8, v%d" % (t5, t4)); a("v_add_u32 v%d, v%d, v%d" % (t5, t5, c_))
        for j in range(4):
            a("s_add_u32 s62, s%d, %d" % (sW, j)); a("s_and_b32 s%d, s62, 3" % (sFB + j))
            a("v_xor_b32 v%d, s%d, v%d" % (t4, sFB + j, r_)); a("v_lshlrev_b32 v%d, 6, v%d" % (t4, t4)); a("v_add_u32 v%d, v%d, v%d" % (bad + j, t4, t5))
            for rg in (1, 2): a("v_add_u32 v%d, %d, v%d" % (bad + 4 * rg + j, 57344 * rg, bad + j))
        a("v_and_b32 v%d, 1, v%d" % (t4, L)); a("v_bfe_u32 v%d, v%d, 4, 1" % (t5, L))
        a("v_cmp_eq_u32 s[62:63], v%d, v%d" % (t4, t5))
        a("v_mov_b32 v%d, 0x3f803f80" % t4); a("v_mov_b32 v%d, 0" % t5)
        for q in range(4): a("v_cndmask_b32 v%d, v%d, v%d, s[62:63]" % (sel + q, t5, t4))
        a("v_and_b32 v%d, 1, v%d" % (t4, L)); a("v_lshlrev_b32 v%d, 6, v%d" % (t4, t4))
        a("v_lshrrev_b32 v%d, 4, v%d" % (t5, L)); a("v_lshlrev_b32 v%d, 4, v%d" % (t5, t5))
        a("v_add_u32 v%d, v%d, v%d" % (t4, t4, t5)); a("v_add_u32 v%d, %d, v%d" % (csw, CS_LDS, t4))
        a("v_lshrrev_b32 v%d, 5, v%d" % (t4, L)); a("v_lshlrev_b32 v%d, 4, v%d" % (t4, t4)); a("v_add_u32 v%d, %d, v%d" % (csr, CS_LDS, t4))
        a("v_lshlrev_b32 v%d, 4, v%d" % (voffQK, L))
        a("v_and_b32 v%d, 31, v%d" % (t4, L)); a("v_lshlrev_b32 v%d, 5, v%d" % (t4, t4))
        a("v_lshrrev_b32 v%d, 5, v%d" % (t5, L)); a("v_lshlrev_b32 v%d, 4, v%d" % (t5, t5)); a("v_add_u32 v%d, v%d, v%d" % (voffV, t4, t5))
        for k_, bit in enumerate((0, 1, 3, 4)):
            a("v_bfe_u32 v%d, v%d, %d, 1" % (t4, L, bit)); a("v_cmp_eq_u32 s[%d:%d], 1, v%d" % (62 + 2 * k_, 63 + 2 * k_, t4))
        setup_lines = a.L; a.L = real
        per = (len(setup_lines) + len(startq) - 1) // len(startq); p_ = 0
        while startq or p_ < len(setup_lines):
            for ln in setup_lines[p_:p_ + per]: a(ln)
            p_ += per
            if startq:
                it, ent = startq.pop(0); emit_dma(it, ent)
        a("s_getpc_b64 s[22:23]")
        a.label("Lpc0")
        a("v_lshlrev_b32 v%d, 7, v%d" % (t0, L)); a("s_lshl_b32 s20, s%d, 13" % sW); a("v_add_u32 v%d, s20, v%d" % (t0, t0))
        a("v_min_u32 v%d, Lend-Lpc0-4, v%d" % (t0, t0)); a("v_and_b32 v%d, 0xfffffffc, v%d" % (t0, t0))
        a.vmem("global_load_dword v%d, v%d, s[22:23]" % (dummy, t0), "pf")
        a("s_waitcnt lgkmcnt(0)")
        a("s_add_u32 s%d, s%d, 0x9e3779b9" % (sTAG, sTAG))

        def reads(tg, passB):
            item = (tg >> 2) + (8 if passB else 0); sp = tg & 3
            slot = item % 5; rg = slot // 2; ib = (slot % 2) * SLOT
            buf = WB + 16 * (tg & 1); R = []
            if not passB:
                R.append("ds_read_b128 a[%d:%d], v%d offset:%d" % (XA + 4 * tg, XA + 4 * tg + 3, xad + 4 * rg + sp, ib))
                for j in range(3):
                    for u in range(2):
                        R.append("ds_read_b64_tr_b16 v[%d:%d], v%d offset:%d" % (buf + 4 * j + 2 * u, buf + 4 * j + 2 * u + 1, aad + 3 * rg + j, ib + sp * 3072 + u * 768))
            else:
                pa = pieceB(item, sp); rg = pa // 57344; ib = pa % 57344
                for j in range(4):
                    for u in range(2):
                        R.append("ds_read_b64_tr_b16 v[%d:%d], v%d offset:%d" % (buf + 4 * j + 2 * u, buf + 4 * j + 2 * u + 1, bad + 4 * rg + j, ib + u * 1024))
            return R
        def mfmas(tg, passB):
            buf = WB + 16 * (tg & 1); xa = "a[%d:%d]" % (XA + 4 * tg, XA + 4 * tg + 3); M = []; first = (tg == 0)
            n = 4 if passB else 3; acc0 = accB if passB else accA
            for j in range(n):
                acc = "v[%d:%d]" % (acc0 + 16 * j, acc0 + 16 * j + 15)
                M.append("v_mfma_f32_32x32x16_bf16 %s, v[%d:%d], %s, %s" % (acc, buf + 4 * j, buf + 4 * j + 3, xa, "0" if first else acc))
            if not passB:
                g = "v[%d:%d]" % (G, G + 15)
                M.append("v_mfma_f32_32x32x16_bf16 %s, %s, %s, %s" % (g, xa, xa, "0" if first else g))
                rs = "v[%d:%d]" % (RS, RS + 3)
                M.append("v_mfma_f32_16x16x32_bf16 %s, v[%d:%d], %s, %s" % (rs, sel, sel + 3, xa, "0" if first else rs))
            cs = "v[%d:%d]" % (CSA, CSA + 3)
            M.append("v_mfma_f32_16x16x32_bf16 %s, v[%d:%d], v[%d:%d], %s" % (cs, buf, buf + 3, sel, sel + 3, "0" if first else cs))
            return M
        pend = []
        for i in range(4, 12 if OPT["lateb"] else 16): pend += [(i, e) for e in dma_list(i)]
        lateB = []
        if OPT["lateb"]:
            for i in range(12, 16): lateB += [(i, e) for e in dma_list(i)]
        def run_pass(passB, hook=None):
            item0 = 8 if passB else 0; nf = 4 if passB else 3
            a.vm_wait(("item", item0)); a("s_barrier")
            if not passB: st("dataA")
            cur_bar = item0
            R0 = reads(0, passB)
            if not passB: a.lds(R0[0], ("rd", 0, 0)); R0 = R0[1:]
            for q in range(0, len(R0), 2):
                a.lds(R0[q], ("rd", 0, q // 2)); a.lds(R0[q + 1], ("rd", 0, q // 2))
            for tg in range(32):
                nxt = tg + 1
                boundary = nxt < 32 and (nxt & 3) == 0
                R = reads(nxt, passB) if nxt < 32 else []
                M = mfmas(tg, passB)
                if boundary:
                    a.lg_wait(("rd", tg, nf - 1))
                    cur_bar = item0 + (nxt >> 2)
                    if passB and cur_bar == OPT["f2bar"]: a.vm_wait("st")
                    a.vm_wait(("item", cur_bar)); a("s_barrier")
                    st("b%d" % cur_bar) if gen_common.STAMP_SET else None
                chunks = [[] for _ in M]; ri = 0
                if not passB and R: chunks[0].append((R[0], ("rd", nxt, 0))); ri = 1
                fr = 0; pos = 0
                while ri < len(R):
                    chunks[pos].append((R[ri], ("rd", nxt, fr))); chunks[pos].append((R[ri + 1], ("rd", nxt, fr)))
                    ri += 2; fr += 1
                    if len(chunks[pos]) >= 3: pos += 1
                ndma = 2
                for mi, m in enumerate(M):
                    if mi < nf: a.lg_wait(("rd", tg, mi))
                    a(m)
                    for (r, tag) in chunks[mi]: a.lds(r, tag)
                    if mi >= 2 and ndma and pend and pend[0][0] <= cur_bar + 4:
                        it, ent = pend.pop(0); emit_dma(it, ent); ndma -= 1
                    if boundary and hook and mi == 2: hook(cur_bar)
        run_pass(False)
        st("passA")
        a("s_lshl_b32 s20, s%d, 7" % sFA); a("v_add_u32 v%d, s20, v%d" % (t0, csw))
        a.lds("ds_write_b128 v%d, v[%d:%d]" % (t0, CSA, CSA + 3), "csw")
        a("v_cndmask_b32 v%d, v%d, v%d, s[68:69]" % (t1, RS, RS + 1))
        a("v_mul_f32 v%d, %s, v%d" % (t1, hex(f32bits(-1.0 / 512)), t1))
        a("v_mov_b32 v%d, v%d" % (mean2, t1)); a("v_mov_b32 v%d, v%d" % (mean2 + 1, t1))
        for q in range(4):
            b = G + 4 * q
            a("v_cndmask_b32 v%d, v%d, v%d, s[62:63]" % (b, b, b + 1)); a("v_cndmask_b32 v%d, v%d, v%d, s[62:63]" % (b + 2, b + 2, b + 3))
            a("v_cndmask_b32 v%d, v%d, v%d, s[64:65]" % (b, b, b + 2))
        a("v_cndmask_b32 v%d, v%d, v%d, s[66:67]" % (G, G, G + 4)); a("v_cndmask_b32 v%d, v%d, v%d, s[66:67]" % (G + 8, G + 8, G + 12))
        a("v_cndmask_b32 v%d, v%d, v%d, s[68:69]" % (t2, G, G + 8))
        a("v_mov_b32 v%d, v%d" % (t3, t2))
        a("v_bfe_u32 v%d, v%d, 2, 1" % (t4, L)); a("v_cmp_eq_u32 s[20:21], 1, v%d" % t4)
        a("v_permlane32_swap_b32 v%d, v%d" % (t2, t3))
        a("v_cndmask_b32 v%d, v%d, v%d, s[20:21]" % (t2, t2, t3))
        a("v_mul_f32 v%d, %s, v%d" % (t2, hex(f32bits(1.0 / 512)), t2))
        a("v_fma_f32 v%d, -v%d, v%d, v%d" % (t2, t1, t1, t2))
        a("v_max_f32 v%d, 0, v%d" % (t2, t2))
        a("v_cvt_pk_bf16_f32 v%d, v%d, v%d" % (t2, t2, t2)); a("v_lshlrev_b32 v%d, 16, v%d" % (t2, t2))
        a("v_add_f32 v%d, %s, v%d" % (t2, hex(f32bits(1e-5)), t2))
        a("v_cvt_pk_bf16_f32 v%d, v%d, v%d" % (t2, t2, t2)); a("v_lshlrev_b32 v%d, 16, v%d" % (t2, t2))
        a("v_sqrt_f32 v%d, v%d" % (t2, t2))
        a("v_cvt_pk_bf16_f32 v%d, v%d, v%d" % (t2, t2, t2)); a("v_lshlrev_b32 v%d, 16, v%d" % (t2, t2))
        a("v_rcp_f32 v%d, v%d" % (rstd, t2))
        skip = a.newlabel("nors")
        a("s_cmp_lg_u32 s%d, 0" % sCG); a("s_cbranch_scc1 %s" % skip)
        a("s_lshl_b32 s20, s%d, 7" % sTILE); a("s_add_u32 s20, s20, %s" % hex(RSTD))
        a("v_and_b32 v%d, 31, v%d" % (t1, L)); a("v_lshlrev_b32 v%d, 2, v%d" % (t1, t1))
        a("buffer_store_dword v%d, v%d, s[%d:%d], s20 offen %s" % (rstd, t1, sWS, sWS + 3, SC1))
        a.label(skip)
        a.lg_wait("csw"); a("s_barrier")
        def cs_reads(frag_s, lds_off, dst):
            a("s_lshl_b32 s20, s%d, 7" % frag_s); a("v_add_u32 v%d, s20, v%d" % (t0, csr))
            for q in range(4):
                a.lds("ds_read_b128 v[%d:%d], v%d offset:%d" % (dst + 4 * q, dst + 4 * q + 3, t0, lds_off + 32 * q), ("csr", dst))
        def epi_frag(acc, frag_s, cs, kindA):
            if kindA:
                a("s_mul_i32 s20, s%d, 3" % sCG); a("s_add_u32 s20, s20, s%d" % frag_s)
                a("s_and_b32 s21, s20, 15"); a("s_lshr_b32 s20, s20, 4")
                a("s_lshl_b32 s22, s20, 21"); a("s_lshl_b32 s21, s21, 17"); a("s_add_u32 s22, s22, s21")
                a("s_lshl_b32 s21, s%d, 10" % sTILE); a("s_add_u32 s22, s22, s21"); a("s_add_u32 s23, s22, 65536")
                a("s_cmp_eq_u32 s20, 0"); a("s_cselect_b32 s24, %s, 1.0" % hex(f32bits(CEXP)))
                a("s_cmp_eq_u32 s20, 2"); a("s_cselect_b64 s[26:27], -1, 0")
                a("v_mul_f32 v%d, s24, v%d" % (sc2, rstd)); a("v_mov_b32 v%d, v%d" % (sc2 + 1, sc2))
                a("v_cndmask_b32 v%d, v%d, v%d, s[26:27]" % (t2, voffQK, voffV))
            else:
                a("s_lshl_b32 s22, s%d, 2" % sL0); a("s_lshl_b32 s21, s%d, 1" % frag_s); a("s_add_u32 s22, s22, s21")
                a("s_mul_i32 s21, s%d, 112" % sTILE); a("s_add_u32 s22, s22, s21")
                a("s_lshl_b32 s22, s22, 10"); a("s_add_u32 s22, s22, %s" % hex(HF)); a("s_add_u32 s23, s22, 1024")
            a.lg_wait(("csr", cs))
            for r in range(0, 16, 2):
                a("v_pk_fma_f32 v[%d:%d], v[%d:%d], v[%d:%d], v[%d:%d]" % (acc + r, acc + r + 1, mean2, mean2 + 1, cs + r, cs + r + 1, acc + r, acc + r + 1))
            if kindA:
                for r in range(0, 16, 2):
                    a("v_pk_mul_f32 v[%d:%d], v[%d:%d], v[%d:%d]" % (acc + r, acc + r + 1, sc2, sc2 + 1, acc + r, acc + r + 1))
            for r in range(0, 16, 2): a("v_cvt_pk_bf16_f32 v%d, v%d, v%d" % (cs + r // 2, acc + r, acc + r + 1))
            if not kindA:
                for q in range(8): a("v_pk_max_i16 v%d, v%d, 0" % (cs + q, cs + q))
            vo = t2 if kindA else voffQK; lab = None
            if not kindA:
                lab = a.newlabel("nost")
                a("s_cmp_ge_u32 s%d, 2" % frag_s); a("s_cselect_b32 s21, s%d, 0" % sLIGHT); a("s_cmp_lg_u32 s21, 0"); a("s_cbranch_scc1 %s" % lab)
            a("buffer_store_dwordx4 v[%d:%d], v%d, s[%d:%d], s22 offen %s" % (cs, cs + 3, vo, sWS, sWS + 3, SC1))
            a("buffer_store_dwordx4 v[%d:%d], v%d, s[%d:%d], s23 offen %s" % (cs + 4, cs + 7, vo, sWS, sWS + 3, SC1))
            if lab: a.label(lab)
            if kindA: a.vm.append("st"); a.vm.append("st")
        for j in range(3): cs_reads(sFA + j, 0, accB + 16 * j)
        real = a.L; a.L = []; vm_before = list(a.vm)
        for j in range(3): epi_frag(accA + 16 * j, sFA + j, accB + 16 * j, True)
        epi_lines = a.L; a.L = real
        n_st_total = len(a.vm) - len(vm_before); a.vm = vm_before
        valu_idx = [k for k, ln in enumerate(epi_lines) if ln.startswith("v_pk_") or ln.startswith("v_cvt")]
        step_ = max(1, len(valu_idx) // max(1, len(lateB))); marks = set(valu_idx[::step_][:len(lateB)])
        for k, ln in enumerate(epi_lines):
            if k in marks and lateB:
                it, ent = lateB.pop(0); emit_dma(it, ent)
            a(ln)
            if ln.startswith("buffer_store"): a.vm.append("st")
            if ln.startswith("s_waitcnt lgkmcnt"): pass
        while lateB:
            it, ent = lateB.pop(0); emit_dma(it, ent)
        sTW = 64
        if OPT["wpf"]:
            srd(a, sTW, "s%d" % sW2P, "s%d" % (sW2P + 1), 1792 * 1024)
            for r_ in range(2):
                lim = 64 if r_ == 0 else 48
                a("s_mul_i32 s20, s%d, 448" % sSLOT); a("s_mul_i32 s21, s%d, 112" % sW); a("s_add_u32 s20, s20, s21"); a("s_add_u32 s20, s20, %d" % (64 * r_))
                a("v_add_u32 v%d, s20, v%d" % (t3, L))
                a("v_lshrrev_b32 v%d, 3, v%d" % (t4, t3)); a("v_lshlrev_b32 v%d, 10, v%d" % (t4, t4))
                a("v_and_b32 v%d, 7, v%d" % (t5, t3)); a("v_lshlrev_b32 v%d, 7, v%d" % (t5, t5)); a("v_add_u32 v%d, v%d, v%d" % (t4, t4, t5))
                if lim < 64:
                    a("v_mov_b32 v%d, 0x7ff00000" % t5); a("s_mov_b32 s22, %d" % lim); a("v_cmp_gt_u32 s[20:21], s22, v%d" % L); a("v_cndmask_b32 v%d, v%d, v%d, s[20:21]" % (t4, t5, t4))
                a.vmem("buffer_load_dword v%d, v%d, s[%d:%d], 0 offen" % (dummy, t4, sTW, sTW + 3), "pf")
            srd(a, sTW, "s%d" % sWOP, "s%d" % (sWOP + 1), 512 * 1024)
            a("s_lshl_b32 s20, s%d, 7" % sSLOT); a("s_lshl_b32 s21, s%d, 5" % sW); a("s_add_u32 s20, s20, s21")
            a("v_add_u32 v%d, s20, v%d" % (t3, L)); a("v_lshlrev_b32 v%d, 7, v%d" % (t3, t3))
            a("v_mov_b32 v%d, 0x7ff00000" % t5); a("s_mov_b32 s22, 32"); a("v_cmp_gt_u32 s[20:21], s22, v%d" % L); a("v_cndmask_b32 v%d, v%d, v%d, s[20:21]" % (t3, t5, t3))
            a.vmem("buffer_load_dword v%d, v%d, s[%d:%d], 0 offen" % (dummy, t3, sTW, sTW + 3), "pf")
        st("epiA")
        KL, VL = self.KL, self.VL
        pol2, polad2 = tmp + 8, tmp + 9
        QA, QB_ = self.QA, self.QB
        wr_state = [0]
        def w2_round():
            LPW = OPT["lpw"]; r_ = wr_state[0]; wr_state[0] += 1
            srd(a, 64, "s%d" % sW2P, "s%d" % (sW2P + 1), 1792 * 1024)
            a("s_mul_i32 s20, s%d, %d" % (sSLOT, 4 * LPW)); a("s_mul_i32 s21, s%d, %d" % (sW, LPW)); a("s_add_u32 s20, s20, s21"); a("s_add_u32 s20, s20, %d" % (r_ * 128 * LPW))
            a("v_add_u32 v%d, s20, v%d" % (t3, L))
            a("v_lshrrev_b32 v%d, 3, v%d" % (t4, t3)); a("v_and_b32 v%d, 1, v%d" % (t5, t4)); a("v_mul_u32_u24 v%d, 896, v%d" % (t5, t5))
            a("v_lshrrev_b32 v%d, 1, v%d" % (t4, t4)); a("v_add_u32 v%d, v%d, v%d" % (t4, t4, t5)); a("v_lshlrev_b32 v%d, 10, v%d" % (t4, t4))
            a("v_and_b32 v%d, 7, v%d" % (t5, t3)); a("v_lshlrev_b32 v%d, 7, v%d" % (t5, t5)); a("v_add_u32 v%d, v%d, v%d" % (t4, t4, t5))
            a("v_mov_b32 v%d, 0x7ff00000" % t5)
            a("s_mov_b32 s22, %d" % LPW); a("v_cmp_gt_u32 s[20:21], s22, v%d" % L); a("v_cndmask_b32 v%d, v%d, v%d, s[20:21]" % (t4, t5, t4))
            a("s_mov_b32 s22, 14336"); a("v_cmp_gt_u32 s[20:21], s22, v%d" % t3); a("v_cndmask_b32 v%d, v%d, v%d, s[20:21]" % (t4, t5, t4))
            a.vmem("buffer_load_dword v%d, v%d, s[64:67], 0 offen" % (dummy, t4), "pf")
        def hookB(bar):
            if bar in OPT["wr"]: w2_round()
            if bar == OPT["t3w2"]: self.touch_slow(sW2P, 14, 1792, t3, t4, dummy)
            if bar == OPT["t3wo"]: self.touch_slow(sWOP, 4, 512, t3, t4, dummy)
            if bar == OPT["f2bar"]:
                a("s_lshl_b32 s20, s%d, 8" % sRB); a("s_lshl_b32 s21, s%d, 2" % sCG); a("s_add_u32 s20, s20, s21"); a("s_add_u32 s20, s20, %s" % hex(F2))
                self.flag_store(20, t0, t1)
            if bar == 14:
                a("s_lshl_b32 s20, s%d, 1" % sQB); a("s_sub_u32 s20, s20, 2")
                a("v_lshrrev_b32 v%d, 4, v%d" % (t0, L)); a("v_add_u32 v%d, s20, v%d" % (t0, t0)); a("v_max_i32 v%d, 0, v%d" % (t0, t0))
                a("v_lshlrev_b32 v%d, 8, v%d" % (t0, t0)); a("v_and_b32 v%d, 15, v%d" % (t1, L)); a("v_lshlrev_b32 v%d, 2, v%d" % (t1, t1))
                a("v_add_u32 v%d, v%d, v%d" % (polad2, t0, t1))
                a("s_mov_b32 s31, %s" % hex(F2))
                a.vmem("buffer_load_dword v%d, v%d, s[%d:%d], s31 offen %s" % (pol2, polad2, sWS, sWS + 3, SC1), "f2")
            if bar == 15:
                a.vm_wait("f2")
                self.check_flags(pol2, polad2, 31)
                st("f2ok") if gen_common.STAMP_SET else None
                a("s_lshl_b32 s20, s%d, 16" % sHEAD)
                a("s_lshl_b32 s21, s%d, 3" % sQB); a("s_lshl_b32 s22, s%d, 2" % sW); a("s_add_u32 s21, s21, s22"); a("s_sub_u32 s21, s21, 8")
                a("s_lshl_b32 s21, s21, 10"); a("s_add_u32 s21, s21, s20")
                a("s_add_u32 s23, s21, %s" % hex(KF)); a("s_add_u32 s24, s21, %s" % hex(VF))
                a("s_cmp_eq_u32 s%d, 0" % sQB); a("s_cselect_b32 s25, 1, 0"); a("s_cmp_lt_u32 s%d, 2" % sW); a("s_cselect_b32 s25, s25, 0")
                a("s_cmp_lg_u32 s25, 0"); a("s_cselect_b32 s23, 0x7ff00000, s23"); a("s_cselect_b32 s24, 0x7ff00000, s24")
                a("s_lshl_b32 s22, s%d, 12" % sW); a("s_add_u32 m0, s22, %d" % KL)
                for j in range(4): a.vmem("buffer_load_dwordx4 v%d, s[%d:%d], s23 offen offset:%d %s lds" % (voffQK, sWS, sWS + 3, 1024 * j, SC1), "q")
                a("s_add_u32 m0, s22, %d" % VL)
                for j in range(4): a.vmem("buffer_load_dwordx4 v%d, s[%d:%d], s24 offen offset:%d %s lds" % (voffQK, sWS, sWS + 3, 1024 * j, SC1), "q")
                a("s_lshl_b32 s21, s%d, 3" % sQB); a("s_lshl_b32 s22, s%d, 1" % sW); a("s_add_u32 s21, s21, s22")
                a("s_lshl_b32 s21, s21, 10"); a("s_add_u32 s21, s21, s20"); a("s_add_u32 s21, s21, %s" % hex(QF))
                a.vmem("buffer_load_dwordx4 a[%d:%d], v%d, s[%d:%d], s21 offen %s" % (QA, QA + 3, voffQK, sWS, sWS + 3, SC1), "q")
                a.vmem("buffer_load_dwordx4 a[%d:%d], v%d, s[%d:%d], s21 offen offset:1024 %s" % (QB_, QB_ + 3, voffQK, sWS, sWS + 3, SC1), "q")
        run_pass(True, hookB)
        assert not pend
        st("passB")
        a("s_lshl_b32 s20, s%d, 7" % sFB); a("v_add_u32 v%d, s20, v%d" % (t0, csw))
        a.lds("ds_write_b128 v%d, v[%d:%d] offset:512" % (t0, CSA, CSA + 3), "csw")
        a.lg_wait("csw"); a("s_barrier")
        for j in range(4): cs_reads(sFB + j, 512, accA + 16 * j)
        for j in range(4): epi_frag(accB + 16 * j, sFB + j, accA + 16 * j, False)
        st("epiB")

    def phase_cde(self):
        a, st = self.a, self.st
        KL, VL, ONES = self.KL, self.VL, self.ONES
        QA, QB_ = self.QA, self.QB
        V = Alloc(2, 256)
        sTINV, sT0 = 46, 47
        sRB64, sCT, sWM, sKH = 48, 49, 50, 51
        sW2, sWO, sXR = 32, 36, 40
        sM0W, sOW2, sOWO, sOH, sOO, sXO, sF4 = 52, 53, 44, 45, 60, 61, 31
        sROT = 62
        sOUT = 56
        voff = V("voff"); voffW = V("voffW", 4); wad = V("wad", 6); pol = V("pol"); polad = V("polad"); dummy = V("dummy")
        xr = V("xr", 8, 4); rs = V("rs"); voffO = V("voffO"); vtch = V("vtch")
        markD = V.p
        kad = V("kad"); vad = V("vad"); vstep = V("vstep")
        t0 = V("t", 8, 4); t1, t2, t3, t4, t5 = [t0 + i for i in range(1, 6)]
        SA = V("SA", 32, 4); SB = V("SB", 32, 4)
        MO = V("maskOld", 16, 4); MD = V("maskDiag", 16, 4); CZ = V("CZ", 16, 4)
        AO = V("andOld", 8, 4); AD = V("andDiag", 8, 4)
        PA = V("PA", 8, 4); PB = V("PB", 8, 4)
        mA = V("mA"); mB = V("mB")
        KB, VB, OA, OB = 0, 8, 32, 48
        ACTR = [64 + 4 * i for i in range(16)] + [136 + 4 * i for i in range(30)]
        NACT = len(ACTR)
        a("s_lshl_b32 s20, s%d, 2" % sG); a("s_lshr_b32 s21, s%d, 3" % sSLOT); a("s_add_u32 s%d, s20, s21" % sRB64)
        a("s_and_b32 s%d, s%d, 7" % (sCT, sSLOT))
        if OPT["ctx"]: a("s_xor_b32 s%d, s%d, %d" % (sCT, sCT, OPT["ctx"]))
        a("s_and_b32 s%d, s%d, 1" % (sWM, sW)); a("s_lshr_b32 s%d, s%d, 1" % (sKH, sW))
        a("s_lshr_b32 s20, s%d, 3" % sSLOT)
        a("s_mul_i32 s20, s20, 7"); a("s_add_u32 s20, s20, 1"); a("s_lshr_b32 s%d, s20, 1" % sROT)
        if not OPT["rot"]: a("s_mov_b32 s%d, 0" % sROT)
        a("v_lshlrev_b32 v%d, 4, v%d" % (voff, L))
        a("s_lshl_b32 s20, s%d, 7" % sCT)
        for (sd, lo, rows) in ((sW2, sW2P, 1792), (sWO, sWOP, 512)):
            a("s_add_u32 s%d, s%d, s20" % (sd, lo)); a("s_addc_u32 s%d, s%d, 0" % (sd + 1, lo + 1))
            a("s_sub_u32 s%d, %d, s20" % (sd + 2, rows * 1024)); a("s_mov_b32 s%d, 0x20000" % (sd + 3))
        a("v_lshrrev_b32 v%d, 3, v%d" % (t0, L)); a("v_lshlrev_b32 v%d, 10, v%d" % (t0, t0))
        a("v_bfe_u32 v%d, v%d, 2, 1" % (t1, L)); a("v_bfe_u32 v%d, v%d, 4, 1" % (t2, L))
        a("v_xor_b32 v%d, v%d, v%d" % (t1, t1, t2)); a("v_lshlrev_b32 v%d, 6, v%d" % (t1, t1)); a("v_add_u32 v%d, v%d, v%d" % (t0, t0, t1))
        a("v_and_b32 v%d, 3, v%d" % (t1, L)); a("v_lshlrev_b32 v%d, 4, v%d" % (t1, t1)); a("v_add_u32 v%d, v%d, v%d" % (voffW, t0, t1))
        for j in range(1, 4): a("v_add_u32 v%d, %d, v%d" % (voffW + j, 7168 * j, voffW))
        a("s_lshl_b32 s%d, s%d, 12" % (sM0W, sWM))
        a("s_lshl_b32 s20, s%d, 15" % sWM)
        a("s_mul_i32 s21, s%d, %d" % (sKH, 896 * 1024)); a("s_add_u32 s%d, s20, s21" % sOW2)
        a("s_lshl_b32 s21, s%d, 18" % sKH); a("s_add_u32 s%d, s20, s21" % sOWO)
        NGAM = 18; NPRE = 7
        free_slots = list(range(7))
        slot_of = {}; issued_w = set()
        a("s_lshl_b32 s20, s%d, 13" % sKH); a("s_add_u32 s%d, s%d, s20" % (sM0W, sM0W))
        def rot_group(pos, dst):
            a("s_add_u32 s%d, s%d, %d" % (dst, sROT, pos)); a("s_cmp_ge_u32 s%d, 14" % dst); a("s_cselect_b32 s63, 14, 0"); a("s_sub_u32 s%d, s%d, s63" % (dst, dst))
        def w_dmas(gam, tag=None):
            sl = free_slots.pop(0); slot_of[gam] = sl
            ffn = gam < 14
            sd = sW2 if ffn else sWO
            out = []
            for jq in range(4):
                def em(jq=jq):
                    if not OPT["now"] or tag:
                        if jq == 0:
                            if ffn:
                                rot_group(gam, 68); a("s_lshl_b32 s68, s68, 16"); a("s_add_u32 s68, s68, s%d" % sOW2)
                            else: a("s_add_u32 s68, s%d, %d" % (sOWO, (gam - 14) * 65536))
                        a("s_add_u32 m0, s%d, %d" % (sM0W, sl * 16384))
                        a.vmem("buffer_load_dwordx4 v%d, s[%d:%d], s68 offen offset:%d lds" % (voffW + jq, sd, sd + 3, 1024 * jq), tag or ("w", gam))
                    if jq == 3: issued_w.add(("w", gam))
                out.append(em)
            return out
        def w_pre_dmas():
            out = []
            for i_ in range(NPRE): out += w_dmas(i_, "wpre")
            return out
        bg = w_pre_dmas()
        def touch_wo():
            a("s_lshl_b32 s20, s%d, 7" % sSLOT); a("s_lshl_b32 s21, s%d, 5" % sW); a("s_add_u32 s20, s20, s21")
            a("v_add_u32 v%d, s20, v%d" % (t0, L)); a("v_lshlrev_b32 v%d, 7, v%d" % (t0, t0))
            a("v_mov_b32 v%d, 0x7ff00000" % t1); a("s_mov_b32 s22, 32"); a("v_cmp_gt_u32 s[20:21], s22, v%d" % L)
            a("v_cndmask_b32 v%d, v%d, v%d, s[20:21]" % (t0, t1, t0))
            srd(a, 64, "s%d" % sWOP, "s%d" % (sWOP + 1), 512 * 1024)
            a.vmem("buffer_load_dword v%d, v%d, s[64:67], 0 offen" % (dummy, t0), "pf")
        def bg_issue(n):
            for _ in range(n):
                if bg: bg.pop(0)()
        a("s_lshl_b32 s21, s%d, 3" % sQB); a("s_lshl_b32 s22, s%d, 1" % sW); a("s_add_u32 s%d, s21, s22" % sT0)
        a("s_lshl_b32 s22, s%d, 1" % sW); a("s_sub_u32 s22, 8, s22"); a("s_cmp_eq_u32 s%d, 0" % sQB); a("s_cselect_b32 s%d, s22, 0" % sTINV)
        for q in range(4): a("v_mov_b32 v%d, 0x3f803f80" % (SA + q))
        a("v_add_u32 v%d, %d, v%d" % (t1, ONES, voff)); a("ds_write_b128 v%d, v[%d:%d]" % (t1, SA, SA + 3))
        a("v_and_b32 v%d, 31, v%d" % (t1, L)); a("v_lshrrev_b32 v%d, 5, v%d" % (t2, L)); a("v_lshlrev_b32 v%d, 2, v%d" % (t2, t2))
        a("v_sub_u32 v%d, v%d, v%d" % (t1, t1, t2))
        a("v_mov_b32 v%d, %s" % (t3, hex(f32bits(NEG)))); a("v_mov_b32 v%d, 0" % t4)
        a("v_mov_b32 v%d, 0xffff" % t5); a("v_mov_b32 v%d, 0xffff0000" % (t0 + 6))
        a("s_cmp_lg_u32 s%d, 0" % sTINV); a("s_cselect_b64 s[24:25], -1, 0")
        a("v_cndmask_b32 v%d, v%d, v%d, s[24:25]" % (t0 + 7, t4, t3))
        for grp in range(2):
            for k_ in range(8):
                r = 8 * grp + k_; i0 = 8 * (r >> 2) + (r & 3)
                m = "s[%d:%d]" % (54 + 2 * (k_ & 1), 55 + 2 * (k_ & 1))
                a("v_cmp_ge_i32 %s, v%d, %d" % (m, t1, i0))
                a("v_mov_b32 v%d, v%d" % (CZ + r, t0 + 7))
                a("v_cndmask_b32 v%d, v%d, v%d, %s" % (MD + r, t3, t4, m))
                a("v_cndmask_b32 v%d, v%d, v%d, %s" % (MO + r, t0 + 7, t3, m))
                a("v_cndmask_b32 v%d, v%d, v%d, %s" % (SB + (r & 1), t4, t5 if (r & 1) == 0 else t0 + 6, m))
                if r & 1:
                    a("v_or_b32 v%d, v%d, v%d" % (AD + r // 2, SB, SB + 1)); a("v_not_b32 v%d, v%d" % (AO + r // 2, AD + r // 2))
        a("s_lshl_b32 s22, s%d, 11" % sW); a("s_add_u32 s23, s22, %d" % KL); a("v_add_u32 v%d, s23, v%d" % (kad, voff))
        a("v_bfe_u32 v%d, v%d, 2, 2" % (t1, L)); a("v_lshrrev_b32 v%d, 5, v%d" % (t2, L))
        a("v_lshlrev_b32 v%d, 2, v%d" % (t3, t2)); a("v_add_u32 v%d, v%d, v%d" % (t3, t3, t1)); a("v_lshlrev_b32 v%d, 5, v%d" % (t3, t3))
        a("v_and_b32 v%d, 1, v%d" % (t4, L)); a("v_lshlrev_b32 v%d, 4, v%d" % (t4, t4)); a("v_add_u32 v%d, v%d, v%d" % (t3, t3, t4))
        a("v_bfe_u32 v%d, v%d, 1, 1" % (t4, L)); a("v_lshlrev_b32 v%d, 3, v%d" % (t4, t4)); a("v_add_u32 v%d, v%d, v%d" % (t3, t3, t4))
        a("s_add_u32 s22, s22, %d" % VL); a("v_add_u32 v%d, s22, v%d" % (t3, t3))
        a("v_lshlrev_b32 v%d, 7, v%d" % (t4, t2)); a("v_sub_u32 v%d, %d, v%d" % (t4, ONES + 128, t4))
        a("v_bfe_u32 v%d, v%d, 4, 1" % (t5, L)); a("v_cmp_eq_u32 s[26:27], 1, v%d" % t5)
        a("v_mov_b32 v%d, 1024" % t5); a("v_mov_b32 v%d, 0" % t2)
        a("v_cndmask_b32 v%d, v%d, v%d, s[26:27]" % (vad, t3, t4)); a("v_cndmask_b32 v%d, v%d, v%d, s[26:27]" % (vstep, t5, t2))
        a("v_mov_b32 v%d, %s" % (mA, hex(f32bits(NEG)))); a("v_mov_b32 v%d, %s" % (mB, hex(f32bits(NEG))))
        lab = a.newlabel("kvl"); lab2 = a.newlabel("kvd")
        a("s_cmp_lg_u32 s%d, 0" % sLIGHT); a("s_cbranch_scc1 %s" % lab)
        a("s_waitcnt vmcnt(8)"); a("s_branch %s ; noskip" % lab2)
        a.label(lab); a("s_waitcnt vmcnt(4)")
        a.label(lab2)
        a("s_waitcnt lgkmcnt(0)"); a.lg = []
        a.vm = ["hst"]
        a("s_barrier")
        st("kv")
        def kread(t): return "ds_read_b128 a[%d:%d], v%d offset:%d" % (KB + 4 * (t & 1), KB + 4 * (t & 1) + 3, kad, 1024 * t)
        def smf(dst, t, q, c): return "v_mfma_f32_32x32x16_bf16 v[%d:%d], a[%d:%d], a[%d:%d], %s" % (dst, dst + 15, KB + 4 * (t & 1), KB + 4 * (t & 1) + 3, q, q + 3, c)
        actA = lambda t: 0 <= t <= 8
        actB = lambda t: 1 <= t <= 9
        def set_when(t, pairs):
            lab = a.newlabel("tv"); a("s_cmp_lg_u32 s%d, %d" % (sTINV, t)); a("s_cbranch_scc1 %s" % lab)
            for (dst, src) in pairs:
                for r in range(16): a("v_mov_b32 v%d, %s" % (dst + r, src))
            a.label(lab)
        SCH = OPT["sch"]
        srd(a, sXR, "s%d" % sXP, "s%d" % (sXP + 1), 2048 * 1024)
        a("s_lshl_b32 s20, s%d, 1" % sRB64); a("s_add_u32 s20, s20, s%d" % sWM)
        a("s_lshl_b32 s22, s20, 15"); a("s_lshl_b32 s23, s%d, 7" % sCT); a("s_add_u32 s22, s22, s23"); a("s_lshl_b32 s23, s%d, 6" % sKH); a("s_add_u32 s%d, s22, s23" % sXO)
        a("v_and_b32 v%d, 31, v%d" % (t0, L)); a("v_lshlrev_b32 v%d, 10, v%d" % (t1, t0))
        a("v_lshrrev_b32 v%d, 5, v%d" % (t2, L)); a("v_lshlrev_b32 v%d, 4, v%d" % (t2, t2)); a("v_add_u32 v%d, v%d, v%d" % (voffO, t1, t2))
        def xload():
            a.vmem("buffer_load_dwordx4 v[%d:%d], v%d, s[%d:%d], s%d offen" % (xr, xr + 3, voffO, sXR, sXR + 3, sXO), "x")
            a.vmem("buffer_load_dwordx4 v[%d:%d], v%d, s[%d:%d], s%d offen offset:32" % (xr + 4, xr + 7, voffO, sXR, sXR + 3, sXO), "x")
        bg.append(xload)
        bg_issue(SCH[0])
        a(kread(0))
        def max_block(Sx, m, p):
            b = Sx + 16 * (p & 1)
            for q in range(8): a("v_max3_f32 v%d, v%d, v%d, v%d" % (m, b + 2 * q, b + 2 * q + 1, m))
        for t in range(11):
            st("r%d" % t) if gen_common.STAMP_SET else None
            if t in (2, 4, 6, 8): set_when(t, [(CZ, "0")])
            p = t - 1
            cz = "v[%d:%d]" % (CZ, CZ + 15)
            if t <= 9: a("s_waitcnt lgkmcnt(0)")
            if t <= 9 and actA(t): a(smf(SA + 16 * (t & 1), t, QA, "v[%d:%d]" % (MO, MO + 15) if t == 0 else ("v[%d:%d]" % (MD, MD + 15) if t == 8 else cz)))
            if p >= 0 and actA(p): max_block(SA, mA, p)
            if t <= 9 and actB(t): a(smf(SB + 16 * (t & 1), t, QB_, "v[%d:%d]" % (MO, MO + 15) if t == 1 else ("v[%d:%d]" % (MD, MD + 15) if t == 9 else cz)))
            if t + 1 <= 9: a(kread(t + 1))
            if p >= 0 and actB(p): max_block(SB, mB, p)
            if t == OPT["tf3"]:
                a.vm_wait("hst"); self.flag_store(sF3, t0, t1, cond_wave0=False)
            if t in (3, 7): bg_issue(SCH[1])
        st("p1")
        NMA, NMB = MO, MD
        for m in (mA, mB):
            a("v_mov_b32 v%d, v%d" % (t0, m)); a("v_permlane32_swap_b32 v%d, v%d" % (m, t0)); a("v_max_f32 v%d, v%d, v%d" % (m, m, t0)); a("v_sub_f32 v%d, 0, v%d" % (m, m))
        a("s_cmp_lg_u32 s%d, 0" % sTINV); a("s_cselect_b64 s[24:25], -1, 0")
        a("v_mov_b32 v%d, %s" % (t2, hex(f32bits(NEG))))
        a("v_cndmask_b32 v%d, v%d, v%d, s[24:25]" % (t3, mA, t2)); a("v_cndmask_b32 v%d, v%d, v%d, s[24:25]" % (t4, mB, t2))
        for r in range(16): a("v_mov_b32 v%d, v%d" % (NMA + r, t3)); a("v_mov_b32 v%d, v%d" % (NMB + r, t4))
        a("s_lshl_b32 s20, s%d, 1" % sRB64); a("s_add_u32 s20, s20, s%d" % sWM)
        a("s_mul_i32 s22, s20, 112"); a("s_mul_i32 s21, s%d, 56" % sKH); a("s_add_u32 s22, s22, s21"); a("s_lshl_b32 s22, s22, 10"); a("s_add_u32 s%d, s22, %s" % (sOH, hex(HF)))
        a("s_lshl_b32 s22, s20, 5"); a("s_lshl_b32 s21, s%d, 4" % sKH); a("s_add_u32 s22, s22, s21"); a("s_lshl_b32 s22, s22, 10"); a("s_add_u32 s%d, s22, %s" % (sOO, hex(OF)))
        a("s_lshr_b32 s20, s%d, 1" % sRB64); a("s_lshl_b32 s20, s20, 8"); a("s_and_b32 s21, s%d, 1" % sRB64); a("s_lshl_b32 s21, s21, 3"); a("s_add_u32 s20, s20, s21")
        a("s_add_u32 s31, s20, %s" % hex(F3))
        a("v_bfe_u32 v%d, v%d, 1, 4" % (t0, L)); a("v_lshlrev_b32 v%d, 4, v%d" % (t0, t0)); a("v_and_b32 v%d, 1, v%d" % (t1, L)); a("v_lshlrev_b32 v%d, 2, v%d" % (t1, t1))
        a("v_add_u32 v%d, v%d, v%d" % (polad, t0, t1))
        def act_load(s_):
            sl = ACTR[s_ % NACT]; sp = s_ & 3
            if sp == 0:
                if s_ < 56:
                    rot_group(s_ >> 2, 69); a("s_lshl_b32 s69, s69, 12"); a("s_add_u32 s69, s69, s%d" % sOH)
                else: a("s_add_u32 s69, s%d, %d" % (sOO, (s_ - 56) * 1024))
            a.vmem("buffer_load_dwordx4 a[%d:%d], v%d, s[%d:%d], s69 offen offset:%d %s" % (sl, sl + 3, voff, sWS, sWS + 3, 1024 * sp, SC1), ("a", s_))
        def vreads(t):
            vb = VB + 8 * (t % 3); R = []
            for aa in range(2):
                for u in range(2):
                    R.append("ds_read_b64_tr_b16 a[%d:%d], v%d offset:%d" % (vb + 4 * aa + 2 * u, vb + 4 * aa + 2 * u + 1, vad, 512 * aa + 256 * u))
            return R
        NA0 = OPT["na0"]
        a(kread(0))
        actq = []
        def act_some(n):
            for _ in range(n):
                if actq: act_load(actq.pop(0))
        TP, TC = OPT["tpoll"], OPT["tchk"]
        def pv(Ox, Px, p, aa, first):
            vb = VB + 8 * (p % 3)
            return "v_mfma_f32_32x32x16_bf16 a[%d:%d], a[%d:%d], v[%d:%d], %s" % (Ox, Ox + 15, vb + 4 * aa, vb + 4 * aa + 3, Px + 4 * aa, Px + 4 * aa + 3, "0" if (first and aa == 0) else "a[%d:%d]" % (Ox, Ox + 15))
        def exps(b, lo, hi):
            for r in range(lo, hi): a("v_exp_f32 v%d, v%d" % (b + r, b + r))
        def cvts(b, Px, p, told, tdiag):
            for q in range(8): a("v_cvt_pk_bf16_f32 v%d, v%d, v%d" % (Px + q, b + 2 * q, b + 2 * q + 1))
            if p == told:
                for q in range(8): a("v_and_b32 v%d, v%d, v%d" % (Px + q, Px + q, AO + q))
            if p == tdiag:
                for q in range(8): a("v_and_b32 v%d, v%d, v%d" % (Px + q, Px + q, AD + q))
        for t in range(12):
            st("q%d" % t) if gen_common.STAMP_SET else None
            if t in (2, 4, 6, 8): set_when(t, [(NMA, "v%d" % mA), (NMB, "v%d" % mB)])
            p = t - 1
            pb = t - 2
            M = []
            if t <= 9: a("s_waitcnt lgkmcnt(0)")
            if t <= 9 and actA(t): M.append(smf(SA + 16 * (t & 1), t, QA, "v[%d:%d]" % (NMA, NMA + 15)))
            if t <= 9 and actB(t): M.append(smf(SB + 16 * (t & 1), t, QB_, "v[%d:%d]" % (NMB, NMB + 15)))
            if pb >= 0 and actB(pb): M += [pv(OB, PB, pb, 0, pb == 1), pv(OB, PB, pb, 1, pb == 1)]
            doA = p >= 0 and actA(p); doB = p >= 0 and actB(p)
            def lds_reads():
                if t + 1 <= 9: a(kread(t + 1))
                if t <= 9:
                    for r in vreads(t): a(r)
                    a("v_add_u32 v%d, v%d, v%d" % (vad, vad, vstep))
            if M: a(M.pop(0))
            if len(M) and not doA: a(M.pop(0))
            lds_reads()
            if t + 11 == OPT["tf3"]:
                a.vm_wait("hst"); self.flag_store(sF3, t0, t1, cond_wave0=False)
            if t == TP: a.vmem("buffer_load_dword v%d, v%d, s[%d:%d], s31 offen %s" % (pol, polad, sWS, sWS + 3, SC1), "f3")
            if t == TC:
                a.vm_wait("f3")
                self.check_flags(pol, polad, 31)
                if OPT["htouch"]:
                    a("s_lshl_b32 s20, s%d, 1" % sRB64); a("s_mul_i32 s20, s20, %d" % (112 * 1024)); a("s_add_u32 s20, s20, %s" % hex(HF))
                    a("s_mul_i32 s21, s%d, 28672" % sCT); a("s_add_u32 s20, s20, s21"); a("s_mul_i32 s21, s%d, 7168" % sW); a("s_add_u32 s20, s20, s21")
                    a("v_lshlrev_b32 v%d, 7, v%d" % (t0, L)); a("v_min_u32 v%d, 7040, v%d" % (t0, t0))
                    a.vmem("buffer_load_dword v%d, v%d, s[%d:%d], s20 offen %s" % (dummy, t0, sWS, sWS + 3, SC1), "pf")
                actq.extend(range(NA0))
            if t <= 10: bg_issue(SCH[2])
            if t == OPT["ttouch"] and OPT["wpf2"]: touch_wo()
            if t + 100 == OPT["t3wo"]: self.touch_slow(sWOP, 4, 512, t0, t1, dummy)
            if doA:
                b = SA + 16 * (p & 1)
                for blk in range(4):
                    exps(b, 4 * blk, 4 * blk + 4)
                    if M: a(M.pop(0))
                act_some(OPT["aps"])
                cvts(b, PA, p, 0, 8)
            while M: a(M.pop(0))
            MA = [pv(OA, PA, p, 0, p == 0), pv(OA, PA, p, 1, p == 0)] if doA else []
            if doB:
                b = SB + 16 * (p & 1)
                for blk in range(4):
                    exps(b, 4 * blk, 4 * blk + 4)
                    if MA and blk in (0, 2): a(MA.pop(0))
                act_some(OPT["aps"])
                cvts(b, PB, p, 1, 9)
            while MA: a(MA.pop(0))
        bg_issue(len(bg)); act_some(len(actq))
        st("p2")
        a("s_lshl_b32 s21, s%d, 15" % sT0); a("s_lshl_b32 s22, s%d, 10" % sHEAD); a("s_add_u32 s21, s21, s22")
        a("s_add_u32 s21, s21, %s" % hex(OF)); a("s_add_u32 s22, s21, 32768")
        for (Ox, Px, so) in ((OA, PA, 21), (OB, PB, 22)):
            a("v_accvgpr_read_b32 v%d, a%d" % (t0, Ox + 8)); a("v_rcp_f32 v%d, v%d" % (t0, t0))
            for r in range(8):
                a("v_accvgpr_read_b32 v%d, a%d" % (SA + r, Ox + r)); a("v_mul_f32 v%d, v%d, v%d" % (SA + r, t0, SA + r))
            for q in range(4): a("v_cvt_pk_bf16_f32 v%d, v%d, v%d" % (Px + q, SA + 2 * q, SA + 2 * q + 1))
            a.vmem("buffer_store_dwordx4 v[%d:%d], v%d, s[%d:%d], s%d offen %s" % (Px, Px + 3, voff, sWS, sWS + 3, so, SC1), "ost")

        V = Alloc(markD, 256)
        t0 = V("t", 20, 4); t1, t2, t3, t4, t5 = [t0 + i for i in range(1, 6)]
        PF = 2
        WBf = V("WB", 8 * (PF + 1), 4)
        accF = V("accF", 32, 4); accS = V("accS", 32, 4)
        epv = V("epv", 4, 4); epa = V("epa"); redw = V("redw"); redr = V("redr")
        srd(a, sOUT, "s%d" % sOUTP, "s%d" % (sOUTP + 1), 2048 * 1024)
        a("v_bfe_u32 v%d, v%d, 2, 2" % (t2, L)); a("v_lshrrev_b32 v%d, 5, v%d" % (t1, L))
        a("v_lshlrev_b32 v%d, 2, v%d" % (t1, t1)); a("v_add_u32 v%d, v%d, v%d" % (t1, t1, t2)); a("v_lshlrev_b32 v%d, 7, v%d" % (t1, t1))
        a("v_bfe_u32 v%d, v%d, 4, 1" % (t3, L)); a("v_lshlrev_b32 v%d, 5, v%d" % (t3, t3)); a("v_add_u32 v%d, v%d, v%d" % (t1, t1, t3))
        a("v_and_b32 v%d, 3, v%d" % (t3, L)); a("v_lshlrev_b32 v%d, 3, v%d" % (t3, t3)); a("v_add_u32 v%d, v%d, v%d" % (t1, t1, t3))
        a("s_lshl_b32 s22, s%d, 13" % sKH); a("v_add_u32 v%d, s22, v%d" % (t1, t1))
        a("v_lshrrev_b32 v%d, 1, v%d" % (t2, t2))
        for wn in range(2):
            a("s_xor_b32 s22, s%d, %d" % (sKH, wn))
            a("v_xor_b32 v%d, s22, v%d" % (t3, t2)); a("v_lshlrev_b32 v%d, 6, v%d" % (t3, t3)); a("v_add_u32 v%d, v%d, v%d" % (wad + wn, t1, t3))
            for rg in (1, 2): a("v_add_u32 v%d, %d, v%d" % (wad + 2 * rg + wn, 65536 * rg, wad + wn))
        def reads3(s_):
            gam = s_ >> 2; sp = s_ & 3; b = WBf + 8 * (s_ % (PF + 1))
            base = slot_of[gam] * 16384; rg = base // 65536; ib = base % 65536; R = []
            for wn in range(2):
                for u in range(2):
                    R.append("ds_read_b64_tr_b16 v[%d:%d], v%d offset:%d" % (b + 4 * wn + 2 * u, b + 4 * wn + 2 * u + 1, wad + 2 * rg + wn, ib + sp * 2048 + u * 1024))
            return R
        a.vm_wait("wpre"); a.vm_wait(("a", 0)); a("s_barrier")
        st("d0")
        free_slots.extend([7, 8, 9])
        NST = 72
        next_w = NPRE; next_act = NA0
        wq = []
        s4_done = [False]
        def top_up(s_):
            nonlocal next_w, next_act
            while free_slots and next_w < NGAM:
                wq.extend(w_dmas(next_w)); next_w += 1
        top_up(0)
        a("s_lshl_b32 s20, s%d, 1" % sRB64); a("s_add_u32 s20, s20, s%d" % sWM); a("s_lshl_b32 s20, s20, 7"); a("s_add_u32 s20, s20, %s" % hex(RSTD))
        a("v_and_b32 v%d, 31, v%d" % (t0, L)); a("v_lshlrev_b32 v%d, 2, v%d" % (t0, t0))
        a.vmem("buffer_load_dword v%d, v%d, s[%d:%d], s20 offen %s" % (rs, t0, sWS, sWS + 3, SC1), "x")
        for st0 in range(PF):
            for r in reads3(st0): a.lds(r, ("rd", st0))
        LA = OPT["la"]
        for s_ in range(NST):
            nxt = s_ + PF
            if nxt < NST and (nxt & 3) == 0:
                gam = nxt >> 2
                assert gam < NPRE or ("w", gam) in issued_w, gam
                a.vm_wait(("w", gam))
                if gam == 3: a.vm_wait("ost")
                a("s_barrier")
                st("g%d" % gam) if gen_common.STAMP_SET else None
                if gam == 3:
                    a("s_lshl_b32 s20, s%d, 8" % sQB); a("s_lshl_b32 s21, s%d, 2" % sHEAD); a("s_add_u32 s20, s20, s21"); a("s_add_u32 s20, s20, %s" % hex(F4))
                    self.flag_store(20, t0, t1)
                if gam == 2:
                    lab = a.newlabel("ep1"); a("s_cmp_lg_u32 s2, 0"); a("s_cbranch_scc1 %s" % lab); a("s_cmp_lg_u32 s%d, 0" % sW); a("s_cbranch_scc1 %s" % lab)
                    a("v_lshrrev_b32 v%d, 2, v%d" % (t0, L)); a("v_lshlrev_b32 v%d, 8, v%d" % (t0, t0)); a("v_and_b32 v%d, 3, v%d" % (t1, L)); a("v_lshlrev_b32 v%d, 4, v%d" % (t1, t1))
                    a("v_add_u32 v%d, v%d, v%d" % (epa, t0, t1)); a("s_mov_b32 s20, %s" % hex(F2))
                    a("buffer_load_dwordx4 v[%d:%d], v%d, s[%d:%d], s20 offen %s" % (epv, epv + 3, epa, sWS, sWS + 3, SC1))
                    a.label(lab)
                if gam == 8:
                    lab = a.newlabel("ep2"); loop = a.newlabel("epl"); got = a.newlabel("epg")
                    a("s_cmp_lg_u32 s2, 0"); a("s_cbranch_scc1 %s" % lab); a("s_cmp_lg_u32 s%d, 0" % sW); a("s_cbranch_scc1 %s" % lab)
                    a("s_mov_b32 s20, %s" % hex(F2)); a("s_mov_b32 s23, %d" % SPIN)
                    a.label(loop)
                    for q in range(4): a("v_xor_b32 v%d, s%d, v%d" % (epv + q, sTAG, epv + q))
                    a("v_or_b32 v%d, v%d, v%d" % (epv, epv, epv + 1)); a("v_or_b32 v%d, v%d, v%d" % (epv + 2, epv + 2, epv + 3)); a("v_or_b32 v%d, v%d, v%d" % (epv, epv, epv + 2))
                    a("v_cmp_ne_u32 vcc, 0, v%d" % epv); a("s_cbranch_vccz %s" % got)
                    a("s_sub_u32 s23, s23, 1"); a("s_cmp_eq_u32 s23, 0"); a("s_cbranch_scc1 %s" % lab)
                    a("buffer_load_dwordx4 v[%d:%d], v%d, s[%d:%d], s20 offen %s" % (epv, epv + 3, epa, sWS, sWS + 3, SC1))
                    a("s_waitcnt vmcnt(0)"); a("s_branch %s ; noskip" % loop)
                    a.label(got)
                    a("v_mov_b32 v%d, s%d" % (epv, sTAG)); a("v_mov_b32 v%d, 0" % (epv + 1)); a("s_mov_b32 s20, %s" % hex(EPO))
                    a("s_mov_b64 exec, 1")
                    a("buffer_store_dword v%d, v%d, s[%d:%d], s20 offen %s" % (epv, epv + 1, sWS, sWS + 3, SC1))
                    a("s_mov_b64 exec, -1")
                    a.label(lab)
                if gam == 7:
                    a("s_lshr_b32 s20, s%d, 2" % sRB64); a("s_lshl_b32 s20, s20, 8"); a("s_add_u32 s%d, s20, %s" % (sF4, hex(F4)))
                    a("v_and_b32 v%d, 31, v%d" % (polad, L)); a("v_lshlrev_b32 v%d, 2, v%d" % (polad, polad))
                    a.vmem("buffer_load_dword v%d, v%d, s[%d:%d], s%d offen %s" % (pol, polad, sWS, sWS + 3, sF4, SC1), "f4")
                if gam == 14: st("e0")
                if gam >= 2: free_slots.append(slot_of[gam - 2])
                top_up(s_)
            if nxt < NST:
                for r in reads3(nxt): a.lds(r, ("rd", nxt))
            n_act = 0
            while next_act < NST and next_act <= s_ + LA and n_act < OPT["apd"]:
                if next_act == 56 and not s4_done[0]:
                    if s_ < OPT["s4step"]: break
                    a.vm_wait("f4"); self.check_flags(pol, polad, sF4); s4_done[0] = True
                if not OPT["noa"]: act_load(next_act)
                next_act += 1; n_act += 1
            if wq: wq.pop(0)()
            if wq and len(wq) > 8: wq.pop(0)()
            a.lg_wait(("rd", s_)); a.vm_wait(("a", s_))
            acc0 = accF if s_ < 56 else accS; first = s_ in (0, 56); b = WBf + 8 * (s_ % (PF + 1)); av = ACTR[s_ % NACT]
            for wn in range(2):
                acc = acc0 + 16 * wn
                a("v_mfma_f32_32x32x16_bf16 v[%d:%d], v[%d:%d], a[%d:%d], %s" % (acc, acc + 15, b + 4 * wn, b + 4 * wn + 3, av, av + 3, "0" if first else "v[%d:%d]" % (acc, acc + 15)))
        assert next_w == NGAM and not wq and next_act == NST
        st("main")
        RED = 0
        a("s_lshl_b32 s20, s%d, 13" % sW); a("v_add_u32 v%d, s20, v%d" % (redw, voff))
        a("s_xor_b32 s21, s%d, 2" % sW); a("s_lshl_b32 s21, s21, 13"); a("v_add_u32 v%d, s21, v%d" % (redr, voff))
        a("s_barrier")
        for q in range(4): a("ds_write_b128 v%d, v[%d:%d] offset:%d" % (redw, accF + 16 + 4 * q, accF + 16 + 4 * q + 3, 1024 * q))
        for q in range(4): a("ds_write_b128 v%d, v[%d:%d] offset:%d" % (redw, accS + 16 + 4 * q, accS + 16 + 4 * q + 3, 4096 + 1024 * q))
        a("s_waitcnt lgkmcnt(0)"); a("s_barrier")
        for q in range(4): a("ds_read_b128 v[%d:%d], v%d offset:%d" % (accF + 16 + 4 * q, accF + 16 + 4 * q + 3, redr, 1024 * q))
        for q in range(4): a("ds_read_b128 v[%d:%d], v%d offset:%d" % (accS + 16 + 4 * q, accS + 16 + 4 * q + 3, redr, 4096 + 1024 * q))
        a.lg = []
        a.vm_wait_all()
        a("s_waitcnt lgkmcnt(4)")
        for r in range(16): a("v_add_f32 v%d, v%d, v%d" % (accF + r, accF + r, accF + 16 + r))
        for r in range(16): a("v_mul_f32 v%d, v%d, v%d" % (accF + r, rs, accF + r))
        a("s_waitcnt lgkmcnt(0)")
        for r in range(16): a("v_add_f32 v%d, v%d, v%d" % (accS + r, accS + r, accS + 16 + r))
        for r0 in range(0, 16, 4):
            for q in range(4): a("v_mul_f32 v%d, %s, v%d" % (t0 + q, hex(f32bits(-1.4426950408889634)), accF + r0 + q))
            for q in range(4): a("v_exp_f32 v%d, v%d" % (t0 + q, t0 + q))
            for q in range(4): a("v_add_f32 v%d, 1.0, v%d" % (t0 + q, t0 + q))
            for q in range(4): a("v_rcp_f32 v%d, v%d" % (t0 + q, t0 + q))
            for q in range(4): a("v_mul_f32 v%d, v%d, v%d" % (accF + r0 + q, t0 + q, accF + r0 + q))
            for q in range(4): a("v_mul_f32 v%d, v%d, v%d" % (accS + r0 + q, accF + r0 + q, accS + r0 + q))
        for qp in range(2):
            for e in range(4): a("v_permlane32_swap_b32 v%d, v%d" % (accS + 8 * qp + e, accS + 8 * qp + 4 + e))
        for qp in range(2):
            for d in range(4):
                xv = xr + 4 * qp + d; r0 = accS + 8 * qp + 2 * d
                a("v_lshlrev_b32 v%d, 16, v%d" % (t0, xv)); a("v_and_b32 v%d, 0xffff0000, v%d" % (t1, xv))
                a("v_add_f32 v%d, v%d, v%d" % (t0, t0, r0)); a("v_add_f32 v%d, v%d, v%d" % (t1, t1, r0 + 1))
                a("v_cvt_pk_bf16_f32 v%d, v%d, v%d" % (xv, t0, t1))
            a("buffer_store_dwordx4 v[%d:%d], v%d, s[%d:%d], s%d offen offset:%d %s" % (xr + 4 * qp, xr + 4 * qp + 3, voffO, sOUT, sOUT + 3, sXO, 32 * qp, OPT["outst"]))
        if gen_common.STAMP: a("s_waitcnt vmcnt(0)")
        st("end")
        st.flush(sWS, sWS + 1, sW, t0)

    def build(self):
        self.KL, self.VL, self.ONES = 114688, 131072, 147456
        self.QA, self.QB = 128, 132
        self.phase_ab()
        self.phase_cde()
        a = self.a
        a.label("%s_done" % KNAME)
        a("s_endpgm")
        a.label("Lend")
        a.L = fix_hazards(a.L, True)
        hdr = """; Fused LN + QKV/FFN1 GEMM + sliding-window attention + FFN2/Wo GEMM kernel (generated by my own script)
; @launch grid=(256,1,1) block=(256,1,1) lds=163840
.amdgcn_target "amdgcn-amd-amdhsa--gfx950"
.text
"""
        return hdr + kernel_header(KNAME) + a.text() + kernel_desc(KNAME, 512, 256)
if __name__ == "__main__":
    out = sys.argv[1]
    if "cyc" in sys.argv: gen_common.STAMP_OP = "s_memtime"
    for o in sys.argv[2:]:
        if o.startswith("set:"):
            gen_common.STAMP_SET = o[4:].split(",")
        elif "=" in o:
            k_, v_ = o.split("="); OPT[k_] = eval(v_)
    k = K("stamp" in sys.argv)
    s = k.build()
    s = s.replace(".amdgcn_target", "; STAMPS " + " ".join(k.st.names) + "\n.amdgcn_target", 1) if k.st.names else s
    open(out, "w").write(s)
    print("wrote", out, "stamps:", " ".join(k.st.names))
```
